```python
import torch

def _softmax(x, axis=-1):
    return torch.softmax(x, dim=axis)
def _gelu(x):
    return torch.nn.functional.gelu(x, approximate="tanh")
def _silu(x):
    return torch.nn.functional.silu(x)
def _sigmoid(x):
    return torch.sigmoid(x)
def _layernorm(x, axis=-1, eps=1e-5):
    m = x.mean(dim=axis, keepdim=True)
    v = x.var(dim=axis, keepdim=True, unbiased=False)
    return (x - m) / torch.sqrt(v + eps)
def _scatter_add(tgt, idx, src, axis=0):
    return tgt.clone().index_add_(axis, idx, src)
def _segment_sum(src, seg, n):
    out = torch.zeros((n,) + src.shape[1:], dtype=src.dtype)
    return out.index_add_(0, seg, src)
def _pad(x, pw):
    flat = tuple(v for pair in reversed(pw) for v in pair)
    return torch.nn.functional.pad(x, flat)

kernel_name = 'standalone__kernel_systems_refs_featgraph__graph'

def setup_inputs():

    _w = (lambda a: (lambda t: t.to(torch.bfloat16) if t.is_floating_point() else t)(torch.as_tensor(a)))
    N, deg, D = 50000, 16, 64
    E = N * deg
    scale = D ** -0.5
    src = (lambda lo, hi, *s: torch.randint(lo, hi, s))(0, N, E).to(torch.int64)
    dst = (lambda lo, hi, *s: torch.randint(lo, hi, s))(0, N, E).to(torch.int64)
    return {
        "x": _w((lambda *s: torch.randn(*s, dtype=torch.bfloat16) * 0.8)(N, D)),
        "src": _w(src),
        "dst": _w(dst),
        "w_q": _w((lambda *s: torch.randn(*s, dtype=torch.bfloat16) * 0.8)(D, D) * scale),
        "w_v": _w((lambda *s: torch.randn(*s, dtype=torch.bfloat16) * 0.05)(D, D) * scale),
    }

def reference(x, src, dst, w_q, w_v):
    N, D = x.shape
    xs = x[src]
    xd = x[dst]
    q = xd @ w_q
    logits = torch.einsum('ed,ed->e', xs, q) * (float(D) ** -0.5)
    alpha = _sigmoid(logits)
    msg = alpha[:, None] * (xs @ w_v)
    return _segment_sum(msg, dst, N)
```

```python
N=50000; E=800000; W=250; CH=3200; B=256; NB=196
TS=260
TBL_OFF=0x400000
MAGIC=85599
OFFS_OFF=0; DELTA_OFF=1088; CNT_OFF=2112; PB_OFF=2912; WT_OFF=3712; LIST_OFF=4096; Q_OFF=20480; AGG_OFF=47104; LDS2=97280
CREC=4096
out=[]
def A(s): out.append(s)
def srd(d, b, size):
    A(f"  s_mov_b32 s{d}, s{b}"); A(f"  s_mov_b32 s{d+1}, s{b+1}")
    A(f"  s_mov_b32 s{d+2}, {size}"); A(f"  s_mov_b32 s{d+3}, 0x00020000")
def wave_scan(v):
    for sh in (1,2,4,8):
        A("  s_nop 1"); A(f"  v_add_u32_dpp v{v}, v{v}, v{v} row_shr:{sh} row_mask:0xf bank_mask:0xf bound_ctrl:0")
    A("  s_nop 1"); A(f"  v_add_u32_dpp v{v}, v{v}, v{v} row_bcast:15 row_mask:0xa bank_mask:0xf")
    A("  s_nop 1"); A(f"  v_add_u32_dpp v{v}, v{v}, v{v} row_bcast:31 row_mask:0xc bank_mask:0xf")
    A("  s_nop 1")

hdr = open('standalone__kernel_systems_refs_featgraph__graph.s.ref').read().split('; Override')[0]
A(hdr.rstrip())
A(f"; @launch kernel=fg_part_kernel grid=({W},1,1) block=(1024,1,1) lds=1088")
A(f"; @launch kernel=standalone__kernel_systems_refs_featgraph__graph_kernel grid=({B},1,1) block=(1024,1,1) lds={LDS2}")
A('.amdgcn_target "amdgcn-amd-amdhsa--gfx950"'); A(".text")
A(".globl fg_part_kernel"); A(".p2align 8"); A(".type fg_part_kernel,@function"); A("fg_part_kernel:")
A(f"  s_cmp_ge_u32 s2, {W}"); A("  s_cbranch_scc1 K1_END")
A("  s_load_dwordx2 s[4:5], s[0:1], 8"); A("  s_load_dwordx2 s[6:7], s[0:1], 16"); A("  s_load_dwordx2 s[8:9], s[0:1], 56")
A("  v_lshlrev_b32 v1, 2, v0"); A("  v_mov_b32 v2, 0")
A("  v_cmp_gt_u32 vcc, 257, v0"); A("  s_and_saveexec_b64 s[40:41], vcc")
A("  ds_write_b32 v1, v2"); A("  s_mov_b64 exec, s[40:41]")
A("  s_waitcnt lgkmcnt(0)")
srd(12,4,E*4); srd(16,6,E*4); srd(24,8,E*4)
A(f"  s_add_u32 s10, s8, {TBL_OFF}"); A("  s_addc_u32 s11, s9, 0")
srd(28,10,W*TS*4)
A(f"  s_mul_i32 s3, s2, {CH*4}")
A("  v_lshlrev_b32 v3, 4, v0"); A("  v_add_u32 v3, s3, v3")
A(f"  v_cmp_gt_u32 vcc, {CH//4}, v0"); A("  s_and_saveexec_b64 s[40:41], vcc")
A("  buffer_load_dwordx4 v[4:7], v3, s[16:19], 0 offen")
A("  buffer_load_dwordx4 v[8:11], v3, s[12:15], 0 offen")
A("  s_mov_b64 exec, s[40:41]")
A("  s_barrier")
A("  s_waitcnt vmcnt(0)")
A(f"  s_mov_b32 s20, {MAGIC}"); A(f"  s_mov_b32 s21, {NB}"); A("  v_mov_b32 v2, 1")
A("  s_and_saveexec_b64 s[40:41], vcc")
for i in range(4):
    A(f"  v_mul_u32_u24 v{12+i}, s20, v{4+i}")
    A(f"  v_lshrrev_b32 v{12+i}, 24, v{12+i}")
    A(f"  v_mul_u32_u24 v20, s21, v{12+i}")
    A(f"  v_sub_u32 v20, v{4+i}, v20")
    A(f"  v_lshl_or_b32 v{8+i}, v{8+i}, 8, v20")
    A(f"  v_lshlrev_b32 v{12+i}, 2, v{12+i}")
    A(f"  ds_add_rtn_u32 v{16+i}, v{12+i}, v2")
A("  s_mov_b64 exec, s[40:41]")
A("  s_waitcnt lgkmcnt(0)"); A("  s_barrier")
A("  v_cmp_gt_u32 vcc, 64, v0"); A("  s_and_saveexec_b64 s[42:43], vcc"); A("  s_cbranch_execz K1_NOSCAN")
A("  v_lshlrev_b32 v21, 4, v0"); A("  ds_read_b128 v[24:27], v21"); A("  s_waitcnt lgkmcnt(0)")
A("  v_add_u32 v28, v24, v25"); A("  v_add_u32 v29, v28, v26"); A("  v_add_u32 v30, v29, v27"); A("  v_mov_b32 v31, v30")
wave_scan(31)
A("  v_sub_u32 v32, v31, v30")
A("  v_add_u32 v33, v32, v24"); A("  v_add_u32 v34, v32, v28"); A("  v_add_u32 v35, v32, v29")
A("  ds_write_b128 v21, v[32:35]")
A("  v_cmp_eq_u32 vcc, 63, v0"); A("  s_and_b64 exec, exec, vcc")
A("  v_mov_b32 v22, 1024"); A("  ds_write_b32 v22, v31")
A("K1_NOSCAN:"); A("  s_mov_b64 exec, s[42:43]")
A("  s_waitcnt lgkmcnt(0)"); A("  s_barrier")
A(f"  v_cmp_gt_u32 vcc, {CH//4}, v0"); A("  s_and_saveexec_b64 s[40:41], vcc")
for i in range(4): A(f"  ds_read_b32 v{24+i}, v{12+i}")
A("  s_waitcnt lgkmcnt(0)")
for i in range(4):
    A(f"  v_add_u32 v{24+i}, v{24+i}, v{16+i}")
    A(f"  v_lshlrev_b32 v{24+i}, 2, v{24+i}")
    A(f"  v_add_u32 v{24+i}, s3, v{24+i}")
    A(f"  buffer_store_dword v{8+i}, v{24+i}, s[24:27], 0 offen")
A("  s_mov_b64 exec, s[40:41]")
A("  v_cmp_gt_u32 vcc, 257, v0"); A("  s_and_saveexec_b64 s[40:41], vcc")
A("  ds_read_b32 v30, v1"); A(f"  s_mul_i32 s22, s2, {TS*4}"); A("  v_add_u32 v31, s22, v1")
A("  s_waitcnt lgkmcnt(0)"); A("  buffer_store_dword v30, v31, s[28:31], 0 offen")
A("  s_mov_b64 exec, s[40:41]")
A("K1_END:"); A("  s_endpgm")

KN="standalone__kernel_systems_refs_featgraph__graph_kernel"
A(f".globl {KN}"); A(".p2align 8"); A(f".type {KN},@function"); A(f"{KN}:")
A(f"  s_cmp_ge_u32 s2, {B}"); A("  s_cbranch_scc1 K2_END")
A("  s_load_dwordx2 s[4:5], s[0:1], 0"); A("  s_load_dwordx2 s[6:7], s[0:1], 24"); A("  s_load_dwordx2 s[8:9], s[0:1], 32")
A("  s_load_dwordx2 s[10:11], s[0:1], 40"); A("  s_load_dwordx2 s[12:13], s[0:1], 56")
A("  v_lshrrev_b32 v1, 6, v0"); A("  s_nop 0"); A("  v_readfirstlane_b32 s44, v1")
A("  v_and_b32 v1, 63, v0")
A("  s_waitcnt lgkmcnt(0)")
srd(16,4,N*128); srd(20,6,8192); srd(24,8,8192); srd(28,10,N*128); srd(32,12,E*4)
A(f"  s_add_u32 s14, s12, {TBL_OFF}"); A("  s_addc_u32 s15, s13, 0"); srd(36,14,W*TS*4)
A(f"  s_mul_i32 s40, s2, {NB}")
A(f"  s_sub_u32 s41, {N}, s40"); A(f"  s_min_u32 s41, s41, {NB}")
A(f"  v_mov_b32 v2, {TS*4}"); A("  v_mul_u32_u24 v2, v2, v0"); A("  s_lshl_b32 s3, s2, 2"); A("  v_add_u32 v2, s3, v2")
A("  v_mov_b32 v10, 0"); A("  v_mov_b32 v11, 0")
A(f"  v_cmp_gt_u32 vcc, {W}, v0"); A("  s_and_saveexec_b64 s[46:47], vcc")
A("  buffer_load_dwordx2 v[10:11], v2, s[36:39], 0 offen"); A("  s_mov_b64 exec, s[46:47]")
A("  v_and_b32 v3, 15, v1")
A("  v_lshrrev_b32 v4, 4, v1")
A("  v_and_b32 v5, 7, v1")
A("  v_lshrrev_b32 v6, 3, v1")
A("  v_lshlrev_b32 v7, 4, v5")
A("  v_mov_b32 v20, 0"); A("  v_mov_b32 v21, 0"); A("  v_mov_b32 v22, 0"); A("  v_mov_b32 v23, 0")
A("  v_lshlrev_b32 v24, 4, v0"); A(f"  v_add_u32 v24, {AGG_OFF}, v24")
for k in range(3): A(f"  ds_write_b128 v24, v[20:23] offset:{k*16384}")
A("  v_cmp_gt_u32 vcc, 64, v0"); A("  s_and_saveexec_b64 s[46:47], vcc")
A(f"  ds_write_b128 v24, v[20:23] offset:{3*16384}"); A("  s_mov_b64 exec, s[46:47]")

def wfrag(srdr, base):
    A("  v_lshlrev_b32 v25, 10, v4")
    A("  v_lshl_add_u32 v25, v3, 1, v25")
    A("  v_add_u32 v29, 4096, v25")
    for ks in range(2):
        for nt in range(4):
            r=base+(ks*4+nt)*4
            for j in range(8):
                off=j*128+nt*32
                op = "buffer_load_short_d16" if j%2==0 else "buffer_load_short_d16_hi"
                A(f"  {op} v{(r if j%2==0 else r+32)+j//2}, v{25 if ks==0 else 29}, s[{srdr}:{srdr+3}], 0 offen offset:{off}")
def wcomb(base):
    for i in range(32): A(f"  v_or_b32 v{base+i}, v{base+i}, v{base+32+i}")
A("  s_cmp_ge_u32 s44, 13"); A("  s_cbranch_scc1 K2_NOQ")
wfrag(20,32)
A("  s_lshl_b32 s45, s44, 4"); A("  s_add_u32 s3, s45, s40")
A("  v_add_u32 v26, s3, v3"); A("  v_lshlrev_b32 v26, 7, v26"); A("  v_lshl_add_u32 v26, v4, 4, v26")
A("  buffer_load_dwordx4 v[104:107], v26, s[16:19], 0 offen")
A("  buffer_load_dwordx4 v[108:111], v26, s[16:19], 0 offen offset:64")
A("  s_waitcnt vmcnt(0)"); wcomb(32); A("  s_nop 1")
for nt in range(4):
    A(f"  v_mfma_f32_16x16x32_bf16 v[{112+nt*4}:{115+nt*4}], v[104:107], v[{32+nt*4}:{35+nt*4}], 0")
    A(f"  v_mfma_f32_16x16x32_bf16 v[{112+nt*4}:{115+nt*4}], v[108:111], v[{48+nt*4}:{51+nt*4}], v[{112+nt*4}:{115+nt*4}]")
A("  s_nop 7"); A("  s_nop 7")
A("  v_lshlrev_b32 v26, 9, v4"); A("  v_lshl_add_u32 v26, v3, 1, v26"); A("  s_lshl_b32 s3, s45, 7"); A("  v_add_u32 v26, s3, v26")
for nt in range(4):
    for i in range(0,4,2):
        A(f"  v_cvt_pk_bf16_f32 v27, v{112+nt*4+i}, v{113+nt*4+i}")
        A(f"  ds_write_b16 v26, v27 offset:{Q_OFF+i*128+nt*32}")
        A(f"  ds_write_b16_d16_hi v26, v27 offset:{Q_OFF+(i+1)*128+nt*32}")
A("K2_NOQ:")
def block_scan256(v, tot_s):
    A(f"  v_mov_b32 v28, v{v}")
    wave_scan(28)
    A("  v_cmp_eq_u32 vcc, 63, v1"); A("  s_and_saveexec_b64 s[46:47], vcc")
    A("  s_lshl_b32 s3, s44, 2"); A(f"  v_mov_b32 v29, {WT_OFF}"); A("  v_add_u32 v29, s3, v29")
    A("  ds_write_b32 v29, v28"); A("  s_mov_b64 exec, s[46:47]")
    A("  s_waitcnt lgkmcnt(0)"); A("  s_barrier")
    A(f"  v_mov_b32 v29, {WT_OFF}"); A("  ds_read_b128 v[30:33], v29"); A("  s_waitcnt lgkmcnt(0)")
    A("  v_readfirstlane_b32 s48, v30"); A("  v_readfirstlane_b32 s49, v31"); A("  v_readfirstlane_b32 s50, v32"); A("  v_readfirstlane_b32 s51, v33")
    A("  s_add_u32 s49, s49, s48"); A("  s_add_u32 s50, s50, s49"); A(f"  s_add_u32 s{tot_s}, s51, s50")
    A("  s_mov_b32 s3, 0"); A("  s_cmp_eq_u32 s44, 1"); A("  s_cselect_b32 s3, s48, s3")
    A("  s_cmp_eq_u32 s44, 2"); A("  s_cselect_b32 s3, s49, s3"); A("  s_cmp_eq_u32 s44, 3"); A("  s_cselect_b32 s3, s50, s3")
    A(f"  v_sub_u32 v{v}, v28, v{v}"); A(f"  v_add_u32 v{v}, s3, v{v}")
    A("  s_barrier")
A("  s_waitcnt vmcnt(0)")
A("  v_sub_u32 v12, v11, v10")
A("  v_mov_b32 v13, v12")
block_scan256(12,42)
A("  v_cmp_gt_u32 vcc, 256, v0"); A("  s_and_saveexec_b64 s[46:47], vcc")
A("  v_lshlrev_b32 v14, 2, v0")
A(f"  v_mul_u32_u24 v15, {CH}, v0"); A("  v_add_u32 v15, v15, v10"); A("  v_sub_u32 v15, v15, v12")
A(f"  ds_write_b32 v14, v12 offset:{OFFS_OFF}"); A(f"  ds_write_b32 v14, v15 offset:{DELTA_OFF}")
A("  s_mov_b64 exec, s[46:47]")
A("  s_mov_b32 s43, 0")
A("K2_ROUND:")
A("  v_mov_b32 v20, -1"); A("  v_mov_b32 v21, -1"); A("  v_mov_b32 v22, -1"); A("  v_mov_b32 v23, -1")
A("  v_lshlrev_b32 v24, 4, v0"); A(f"  ds_write_b128 v24, v[20:23] offset:{LIST_OFF}")
A("  v_cmp_gt_u32 vcc, 200, v0"); A("  s_and_saveexec_b64 s[46:47], vcc")
A("  v_lshlrev_b32 v24, 2, v0"); A("  v_mov_b32 v20, 0"); A(f"  ds_write_b32 v24, v20 offset:{CNT_OFF}"); A("  s_mov_b64 exec, s[46:47]")
A("  s_waitcnt lgkmcnt(0)"); A("  s_barrier")
for k in range(4):
    A(f"  v_add_u32 v{36+k}, s43, v0");
    if k: A(f"  v_add_u32 v{36+k}, {1024*k}, v{36+k}")
    A(f"  v_mov_b32 v{40+k}, 0")
for st in (128,64,32,16,8,4,2,1):
    for k in range(4):
        A(f"  v_add_u32 v{44+k}, {st}, v{40+k}"); A(f"  v_lshlrev_b32 v{48+k}, 2, v{44+k}")
        A(f"  ds_read_b32 v{48+k}, v{48+k} offset:{OFFS_OFF}")
    A("  s_waitcnt lgkmcnt(0)")
    for k in range(4):
        A(f"  v_cmp_le_u32 vcc, v{48+k}, v{36+k}"); A("  s_nop 1"); A(f"  v_cndmask_b32 v{40+k}, v{40+k}, v{44+k}, vcc")
for k in range(4):
    A(f"  v_lshlrev_b32 v{48+k}, 2, v{40+k}"); A(f"  ds_read_b32 v{48+k}, v{48+k} offset:{DELTA_OFF}")
A("  s_waitcnt lgkmcnt(0)")
A("  v_mov_b32 v20, 1")
for k in range(4):
    A(f"  v_add_u32 v{48+k}, v{48+k}, v{36+k}"); A(f"  v_lshlrev_b32 v{48+k}, 2, v{48+k}")
    A(f"  v_cmp_gt_u32 s[{52+2*k}:{53+2*k}], s42, v{36+k}")
    A(f"  s_mov_b64 s[46:47], exec"); A(f"  s_mov_b64 exec, s[{52+2*k}:{53+2*k}]")
    A(f"  buffer_load_dword v{52+k}, v{48+k}, s[32:35], 0 offen"); A("  s_mov_b64 exec, s[46:47]")
A("  s_waitcnt vmcnt(0)")
for k in range(4):
    A(f"  s_mov_b64 exec, s[{52+2*k}:{53+2*k}]")
    A(f"  v_and_b32 v{56+k}, 0xff, v{52+k}"); A(f"  v_lshlrev_b32 v{56+k}, 2, v{56+k}")
    A(f"  ds_add_rtn_u32 v{60+k}, v{56+k}, v20 offset:{CNT_OFF}")
A("  s_mov_b64 exec, s[46:47]")
A("  s_waitcnt lgkmcnt(0)"); A("  s_barrier")
A("  v_mov_b32 v12, 0")
A("  v_cmp_gt_u32 vcc, 200, v0"); A("  s_and_saveexec_b64 s[46:47], vcc")
A("  v_lshlrev_b32 v24, 2, v0"); A(f"  ds_read_b32 v12, v24 offset:{CNT_OFF}"); A("  s_waitcnt lgkmcnt(0)")
A("  v_add_u32 v12, 7, v12"); A("  v_and_b32 v12, -8, v12"); A("  s_mov_b64 exec, s[46:47]")
block_scan256(12,60)
A("  v_cmp_gt_u32 vcc, 200, v0"); A("  s_and_saveexec_b64 s[46:47], vcc")
A(f"  ds_write_b32 v24, v12 offset:{PB_OFF}"); A("  s_mov_b64 exec, s[46:47]")
A("  s_waitcnt lgkmcnt(0)"); A("  s_barrier")
for k in range(4):
    A(f"  s_mov_b64 exec, s[{52+2*k}:{53+2*k}]")
    A(f"  ds_read_b32 v{56+k}, v{56+k} offset:{PB_OFF}")
A("  s_waitcnt lgkmcnt(0)")
for k in range(4):
    A(f"  s_mov_b64 exec, s[{52+2*k}:{53+2*k}]")
    A(f"  v_add_u32 v{56+k}, v{56+k}, v{60+k}"); A(f"  v_lshlrev_b32 v{56+k}, 1, v{56+k}")
    A(f"  v_lshrrev_b32 v{52+k}, 8, v{52+k}")
    A(f"  ds_write_b16 v{56+k}, v{52+k} offset:{LIST_OFF}")
A("  s_mov_b64 exec, s[46:47]")
A("  s_waitcnt lgkmcnt(0)"); A("  s_barrier")
A("  s_mul_i32 s61, s44, 13")
A("  s_add_u32 s62, s61, 13"); A("  s_min_u32 s62, s62, s41")
A("  s_cmp_ge_u32 s61, s62"); A("  s_cbranch_scc1 K2_P2DONE")
A("  s_sub_u32 s63, s62, s61")
A("  v_add_u32 v24, s61, v1"); A("  v_lshlrev_b32 v24, 2, v24")
A(f"  ds_read_b32 v30, v24 offset:{PB_OFF}"); A(f"  ds_read_b32 v31, v24 offset:{PB_OFF+4}")
A("  s_waitcnt lgkmcnt(0)")
A("  v_sub_u32 v32, v31, v30"); A("  v_lshrrev_b32 v32, 3, v32")
A("  v_lshrrev_b32 v30, 3, v30"); A("  v_lshrrev_b32 v31, 3, v31"); A("  s_nop 0")
A("  v_readlane_b32 s64, v30, 0"); A("  s_sub_u32 s3, s63, 1"); A("  s_nop 3"); A("  v_readlane_b32 s65, v31, s3")
A("  s_cmp_ge_u32 s64, s65"); A("  s_cbranch_scc1 K2_P2DONE")
A("  s_mov_b32 s66, 0")
A("K2_FIND0:"); A("  v_readlane_b32 s67, v32, s66"); A("  s_nop 3"); A("  s_cmp_lg_u32 s67, 0"); A("  s_cbranch_scc1 K2_FOUND0")
A("  s_add_u32 s66, s66, 1"); A("  s_branch K2_FIND0"); A("K2_FOUND0:")
A("  v_bfe_u32 v8, v1, 5, 1"); A("  v_bfe_u32 v9, v1, 4, 1"); A("  v_lshl_or_b32 v8, v9, 1, v8"); A("  v_bfe_u32 v9, v1, 3, 1"); A("  v_lshl_or_b32 v8, v9, 2, v8")
A("  v_lshl_add_u32 v8, v5, 3, v8"); A("  v_lshlrev_b32 v8, 2, v8")
def qread():
    A("  s_add_u32 s3, s61, s66"); A("  s_lshl_b32 s3, s3, 7"); A("  v_add_u32 v9, s3, v7"); A(f"  ds_read_b128 v[16:19], v9 offset:{Q_OFF}")
qread()
A("  s_lshl_b32 s3, s64, 4"); A("  v_lshlrev_b32 v33, 1, v6"); A("  v_add_u32 v33, s3, v33")
for s in range(8): A(f"  ds_read_u16 v{36+s}, v33 offset:{LIST_OFF+s*16}")
for i in range(8): A(f"  v_mov_b32 v{80+i}, 0")
A("  s_waitcnt lgkmcnt(0)")
for s in range(4):
    A(f"  v_lshl_add_u32 v34, v{36+s}, 7, v7"); A(f"  buffer_load_dwordx4 v[{48+4*s}:{51+4*s}], v34, s[16:19], 0 offen")
    A(f"  v_mov_b32 v{36+s}, v{40+s}")
A("  s_mov_b32 s70, 0xbe38aa3b")
A("K2_LOOP:")
for s in range(4):
    X=48+4*s
    A("  s_cmp_ge_u32 s64, s65"); A("  s_cbranch_scc1 K2_LOOPEND")
    A("  s_waitcnt vmcnt(3) lgkmcnt(0)")
    A("  v_mov_b32 v20, 0"); A(f"  v_dot2c_f32_bf16 v20, v{X}, v16")
    for p in range(1,4): A(f"  v_dot2c_f32_bf16 v20, v{X+p}, v{16+p}")
    A("  s_nop 4"); A("  v_add_f32_dpp v20, v20, v20 quad_perm:[1,0,3,2] row_mask:0xf bank_mask:0xf")
    A("  s_nop 1"); A("  v_add_f32_dpp v20, v20, v20 quad_perm:[2,3,0,1] row_mask:0xf bank_mask:0xf")
    A("  s_nop 1"); A("  v_add_f32_dpp v20, v20, v20 row_half_mirror row_mask:0xf bank_mask:0xf")
    A("  v_mul_f32 v20, s70, v20"); A("  v_exp_f32 v20, v20"); A("  s_nop 0"); A("  v_add_f32 v20, 1.0, v20"); A("  v_rcp_f32 v20, v20"); A("  s_nop 0")
    A("  v_cvt_pk_bf16_f32 v21, v20, 0"); A("  v_and_b32 v21, 0xffff, v21"); A("  v_lshlrev_b32 v22, 16, v21")
    for p in range(4):
        A(f"  v_dot2c_f32_bf16 v{80+2*p}, v{X+p}, v21")
        A(f"  v_dot2c_f32_bf16 v{81+2*p}, v{X+p}, v22")
    A(f"  v_lshl_add_u32 v34, v{36+s}, 7, v7"); A(f"  buffer_load_dwordx4 v[{X}:{X+3}], v34, s[16:19], 0 offen")
    A(f"  ds_read_u16 v{36+s}, v33 offset:{LIST_OFF+128+s*16}")
    if s==3: A("  v_add_u32 v33, 64, v33")
    A("  s_add_u32 s64, s64, 1")
    A("  s_sub_u32 s67, s67, 1"); A("  s_cmp_lg_u32 s67, 0"); A(f"  s_cbranch_scc1 K2_NF{s}")
    A("  s_nop 4")
    for p in range(4): A(f"  v_permlane32_swap_b32 v{80+2*p}, v{81+2*p}"); A("  s_nop 1")
    for p in range(4): A(f"  v_add_f32 v{80+2*p}, v{80+2*p}, v{81+2*p}")
    A("  s_nop 1")
    A("  v_permlane16_swap_b32 v80, v82"); A("  s_nop 1"); A("  v_permlane16_swap_b32 v84, v86"); A("  s_nop 1")
    A("  v_add_f32 v80, v80, v82"); A("  v_add_f32 v84, v84, v86"); A("  s_nop 1")
    A("  v_add_f32_dpp v80, v80, v80 row_ror:8 row_mask:0xf bank_mask:0xf")
    A("  v_add_f32_dpp v84, v84, v84 row_ror:8 row_mask:0xf bank_mask:0xf")
    A("  v_and_b32 v23, 8, v1"); A("  v_cmp_ne_u32 vcc, 0, v23"); A("  s_nop 1"); A("  v_cndmask_b32 v80, v80, v84, vcc")
    A("  s_add_u32 s3, s61, s66"); A("  s_lshl_b32 s3, s3, 8"); A("  v_add_u32 v23, s3, v8")
    A(f"  ds_add_f32 v23, v80 offset:{AGG_OFF}")
    for i in range(8): A(f"  v_mov_b32 v{80+i}, 0")
    A("  s_cmp_ge_u32 s64, s65"); A("  s_cbranch_scc1 K2_LOOPEND")
    A(f"K2_FIND{s+1}:"); A("  s_add_u32 s66, s66, 1"); A("  s_nop 3"); A("  v_readlane_b32 s67, v32, s66"); A("  s_nop 3"); A("  s_cmp_eq_u32 s67, 0"); A(f"  s_cbranch_scc1 K2_FIND{s+1}")
    qread()
    A(f"K2_NF{s}:")
A("  s_branch K2_LOOP")
A("K2_LOOPEND:")
A("K2_P2DONE:")
A("  s_waitcnt vmcnt(0) lgkmcnt(0)"); A("  s_barrier")
A(f"  s_add_u32 s43, s43, {CREC}"); A("  s_cmp_lt_u32 s43, s42"); A("  s_cbranch_scc1 K2_ROUND")
A("  s_cmp_ge_u32 s44, 13"); A("  s_cbranch_scc1 K2_END")
wfrag(24,32)
A("  s_lshl_b32 s45, s44, 4")
A("  v_add_u32 v26, s45, v3"); A("  v_lshlrev_b32 v26, 8, v26"); A("  v_lshl_add_u32 v26, v4, 5, v26")
for h in range(4): A(f"  ds_read_b128 v[{112+4*h}:{115+4*h}], v26 offset:{AGG_OFF+(h//2)*128+(h%2)*16}")
A("  s_waitcnt lgkmcnt(0)")
for h in range(8): A(f"  v_cvt_pk_bf16_f32 v{104+h}, v{112+2*h}, v{113+2*h}")
A("  s_waitcnt vmcnt(0)"); wcomb(32); A("  s_nop 1")
for nt in range(4):
    A(f"  v_mfma_f32_16x16x32_bf16 v[{112+nt*4}:{115+nt*4}], v[104:107], v[{32+nt*4}:{35+nt*4}], 0")
    A(f"  v_mfma_f32_16x16x32_bf16 v[{112+nt*4}:{115+nt*4}], v[108:111], v[{48+nt*4}:{51+nt*4}], v[{112+nt*4}:{115+nt*4}]")
A("  s_nop 7"); A("  s_nop 7")
A("  s_add_u32 s3, s45, s40"); A("  s_lshl_b32 s3, s3, 7")
A("  v_lshlrev_b32 v26, 9, v4"); A("  v_lshl_add_u32 v26, v3, 1, v26"); A("  v_add_u32 v26, s3, v26")
A("  v_lshlrev_b32 v28, 2, v4"); A("  v_add_u32 v28, s45, v28"); A("  v_cmp_gt_u32 vcc, s41, v28"); A("  s_and_b64 exec, exec, vcc")
for nt in range(4):
    for i in range(0,4,2):
        A(f"  v_cvt_pk_bf16_f32 v27, v{112+nt*4+i}, v{113+nt*4+i}")
        A(f"  buffer_store_short v27, v26, s[28:31], 0 offen offset:{i*128+nt*32}")
        A(f"  buffer_store_short_d16_hi v27, v26, s[28:31], 0 offen offset:{(i+1)*128+nt*32}")
        A("  s_nop 1")
A("K2_END:"); A("  s_endpgm")
A('.section .rodata,"a"')
for nm,vg in (("fg_part_kernel",40),(KN,128)):
    A(".p2align 6"); A(f".amdhsa_kernel {nm}")
    A(f"  .amdhsa_next_free_vgpr {vg}"); A("  .amdhsa_next_free_sgpr 80"); A(f"  .amdhsa_accum_offset {vg}")
    A("  .amdhsa_group_segment_fixed_size 0"); A("  .amdhsa_kernarg_size 64"); A("  .amdhsa_user_sgpr_count 2")
    A("  .amdhsa_user_sgpr_kernarg_segment_ptr 1"); A("  .amdhsa_system_sgpr_workgroup_id_x 1"); A(".end_amdhsa_kernel")
open('standalone__kernel_systems_refs_featgraph__graph.s','w').write("\n".join(out)+"\n")
```

```python
import os
VAR=os.environ.get('VAR','')
OUTF=os.environ.get('OUTF','standalone__kernel_systems_refs_featgraph__graph.s')
N=50000; E=800000; W=250; CH=3200; NB=208; B=241; NWV=13; T2=NWV*64
TS=244; TBL_OFF=0x400000; FR_OFF=0x480000; MAGIC=80660
OFFS_OFF=0; DELTA_OFF=1088; CNT_OFF=2112; PB_OFF=2240; WT_OFF=2368; LIST_OFF=4096
LISTN=4608; STG_OFF=LIST_OFF+LISTN*4; STG=2304; LDS2=STG_OFF+NWV*STG
CREC=4096; RPT=5
out=[]
def A(s): out.append(s)
def srd(d, b, size):
    A(f"  s_mov_b32 s{d}, s{b}"); A(f"  s_mov_b32 s{d+1}, s{b+1}")
    A(f"  s_mov_b32 s{d+2}, {size}"); A(f"  s_mov_b32 s{d+3}, 0x00020000")
def wave_scan(v):
    for sh in (1,2,4,8):
        A("  s_nop 1"); A(f"  v_add_u32_dpp v{v}, v{v}, v{v} row_shr:{sh} row_mask:0xf bank_mask:0xf bound_ctrl:0")
    A("  s_nop 1"); A(f"  v_add_u32_dpp v{v}, v{v}, v{v} row_bcast:15 row_mask:0xa bank_mask:0xf")
    A("  s_nop 1"); A(f"  v_add_u32_dpp v{v}, v{v}, v{v} row_bcast:31 row_mask:0xc bank_mask:0xf")
    A("  s_nop 1")
hdr = open('standalone__kernel_systems_refs_featgraph__graph.s.ref').read().split('; Override')[0]
A(hdr.rstrip())
A(f"; @launch kernel=fg_part_kernel grid=({W+1},1,1) block=(1024,1,1) lds=1088")
A(f"; @launch kernel=standalone__kernel_systems_refs_featgraph__graph_kernel grid=({B},1,1) block=({T2},1,1) lds={LDS2}")
A('.amdgcn_target "amdgcn-amd-amdhsa--gfx950"'); A(".text")
A(".globl fg_part_kernel"); A(".p2align 8"); A(".type fg_part_kernel,@function"); A("fg_part_kernel:")
A(f"  s_cmp_gt_u32 s2, {W}"); A("  s_cbranch_scc1 K1_END")
A(f"  s_cmp_eq_u32 s2, {W}"); A("  s_cbranch_scc1 K1_FRAG")
A("  s_load_dwordx2 s[4:5], s[0:1], 8"); A("  s_load_dwordx2 s[6:7], s[0:1], 16"); A("  s_load_dwordx2 s[8:9], s[0:1], 56")
A("  v_lshlrev_b32 v1, 2, v0"); A("  v_mov_b32 v2, 0")
A("  v_cmp_gt_u32 vcc, 257, v0"); A("  s_and_saveexec_b64 s[40:41], vcc")
A("  ds_write_b32 v1, v2"); A("  s_mov_b64 exec, s[40:41]")
A("  s_waitcnt lgkmcnt(0)")
srd(12,4,E*4); srd(16,6,E*4); srd(24,8,E*4)
A(f"  s_add_u32 s10, s8, {TBL_OFF}"); A("  s_addc_u32 s11, s9, 0")
srd(28,10,W*TS*4)
A(f"  s_mul_i32 s3, s2, {CH*4}")
A("  v_lshlrev_b32 v3, 4, v0"); A("  v_add_u32 v3, s3, v3")
A(f"  v_cmp_gt_u32 vcc, {CH//4}, v0"); A("  s_and_saveexec_b64 s[40:41], vcc")
A("  buffer_load_dwordx4 v[4:7], v3, s[16:19], 0 offen")
A("  buffer_load_dwordx4 v[8:11], v3, s[12:15], 0 offen")
A("  s_mov_b64 exec, s[40:41]")
A("  s_barrier")
A("  s_waitcnt vmcnt(0)")
A(f"  s_mov_b32 s20, {MAGIC}"); A(f"  s_mov_b32 s21, {NB}"); A("  v_mov_b32 v2, 1")
A("  s_and_saveexec_b64 s[40:41], vcc")
for i in range(4):
    A(f"  v_mul_u32_u24 v{12+i}, s20, v{4+i}")
    A(f"  v_lshrrev_b32 v{12+i}, 24, v{12+i}")
    A(f"  v_mul_u32_u24 v20, s21, v{12+i}")
    A(f"  v_sub_u32 v20, v{4+i}, v20")
    A(f"  v_lshl_or_b32 v{8+i}, v{8+i}, 8, v20")
    A(f"  v_lshlrev_b32 v{12+i}, 2, v{12+i}")
    A(f"  ds_add_rtn_u32 v{16+i}, v{12+i}, v2")
A("  s_mov_b64 exec, s[40:41]")
A("  s_waitcnt lgkmcnt(0)"); A("  s_barrier")
A("  v_cmp_gt_u32 vcc, 64, v0"); A("  s_and_saveexec_b64 s[42:43], vcc"); A("  s_cbranch_execz K1_NOSCAN")
A("  v_lshlrev_b32 v21, 4, v0"); A("  ds_read_b128 v[24:27], v21"); A("  s_waitcnt lgkmcnt(0)")
A("  v_add_u32 v28, v24, v25"); A("  v_add_u32 v29, v28, v26"); A("  v_add_u32 v30, v29, v27"); A("  v_mov_b32 v31, v30")
wave_scan(31)
A("  v_sub_u32 v32, v31, v30")
A("  v_add_u32 v33, v32, v24"); A("  v_add_u32 v34, v32, v28"); A("  v_add_u32 v35, v32, v29")
A("  ds_write_b128 v21, v[32:35]")
A("  v_cmp_eq_u32 vcc, 63, v0"); A("  s_and_b64 exec, exec, vcc")
A("  v_mov_b32 v22, 1024"); A("  ds_write_b32 v22, v31")
A("K1_NOSCAN:"); A("  s_mov_b64 exec, s[42:43]")
A("  s_waitcnt lgkmcnt(0)"); A("  s_barrier")
A(f"  v_cmp_gt_u32 vcc, {CH//4}, v0"); A("  s_and_saveexec_b64 s[40:41], vcc")
for i in range(4): A(f"  ds_read_b32 v{24+i}, v{12+i}")
A("  s_waitcnt lgkmcnt(0)")
for i in range(4):
    A(f"  v_add_u32 v{24+i}, v{24+i}, v{16+i}")
    A(f"  v_lshlrev_b32 v{24+i}, 2, v{24+i}")
    A(f"  v_add_u32 v{24+i}, s3, v{24+i}")
    A(f"  buffer_store_dword v{8+i}, v{24+i}, s[24:27], 0 offen")
A("  s_mov_b64 exec, s[40:41]")
A(f"  v_cmp_gt_u32 vcc, {B+1}, v0"); A("  s_and_saveexec_b64 s[40:41], vcc")
A("  ds_read_b32 v30, v1"); A(f"  s_mul_i32 s22, s2, {TS*4}"); A("  v_add_u32 v31, s22, v1")
A("  s_waitcnt lgkmcnt(0)"); A("  buffer_store_dword v30, v31, s[28:31], 0 offen")
A("  s_mov_b64 exec, s[40:41]")
A("  s_branch K1_END")
A("K1_FRAG:")
A("  s_load_dwordx2 s[4:5], s[0:1], 24"); A("  s_load_dwordx2 s[6:7], s[0:1], 32"); A("  s_load_dwordx2 s[8:9], s[0:1], 56")
A("  v_and_b32 v1, 63, v0"); A("  v_and_b32 v3, 15, v1"); A("  v_lshrrev_b32 v4, 4, v1"); A("  v_bfe_u32 v5, v0, 6, 3")
A("  s_waitcnt lgkmcnt(0)")
srd(12,4,8192); srd(16,6,8192)
A(f"  s_add_u32 s10, s8, {FR_OFF}"); A("  s_addc_u32 s11, s9, 0"); srd(24,10,16384)
A("  v_lshlrev_b32 v30, 4, v0")
A("  v_cmp_gt_u32 vcc, 512, v0"); A("  s_and_saveexec_b64 s[40:41], vcc"); A("  s_cbranch_execz K1_FV")
A("  v_and_b32 v6, 1, v5"); A("  v_lshrrev_b32 v7, 1, v5")
A("  v_lshlrev_b32 v8, 12, v6"); A("  v_lshl_add_u32 v8, v4, 10, v8"); A("  v_lshl_add_u32 v8, v7, 5, v8"); A("  v_lshl_add_u32 v8, v3, 1, v8")
for j in range(8): A(f"  buffer_load_ushort v{10+j}, v8, s[12:15], 0 offen offset:{j*128}")
A("  s_waitcnt vmcnt(0)")
for j in range(4): A(f"  v_lshl_or_b32 v{20+j}, v{11+2*j}, 16, v{10+2*j}")
A("  buffer_store_dwordx4 v[20:23], v30, s[24:27], 0 offen")
A("K1_FV:"); A("  s_andn2_b64 exec, s[40:41], exec"); A("  s_cbranch_execz K1_END")
A("  v_lshrrev_b32 v6, 2, v5"); A("  v_and_b32 v7, 3, v5")
A("  v_lshlrev_b32 v8, 12, v6"); A("  v_lshl_add_u32 v8, v4, 9, v8"); A("  v_lshl_add_u32 v8, v7, 5, v8"); A("  v_lshl_add_u32 v8, v3, 1, v8")
for j in range(8): A(f"  buffer_load_ushort v{10+j}, v8, s[16:19], 0 offen offset:{(j//4)*2048+(j%4)*128}")
A("  s_waitcnt vmcnt(0)")
for j in range(4): A(f"  v_lshl_or_b32 v{20+j}, v{11+2*j}, 16, v{10+2*j}")
A("  buffer_store_dwordx4 v[20:23], v30, s[24:27], 0 offen")
A("K1_END:"); A("  s_endpgm")

KN="standalone__kernel_systems_refs_featgraph__graph_kernel"
A(f".globl {KN}"); A(".p2align 8"); A(f".type {KN},@function"); A(f"{KN}:")
A(f"  s_cmp_ge_u32 s2, {B}"); A("  s_cbranch_scc1 K2_END")
A("  s_load_dwordx2 s[4:5], s[0:1], 0"); A("  s_load_dwordx2 s[10:11], s[0:1], 40"); A("  s_load_dwordx2 s[12:13], s[0:1], 56")
A("  v_lshrrev_b32 v1, 6, v0"); A("  s_nop 0"); A("  v_readfirstlane_b32 s44, v1")
A("  v_and_b32 v1, 63, v0")
A("  s_waitcnt lgkmcnt(0)")
srd(16,4,N*128); srd(28,10,N*128); srd(32,12,E*4)
A(f"  s_add_u32 s14, s12, {TBL_OFF}"); A("  s_addc_u32 s15, s13, 0"); srd(36,14,W*TS*4)
A(f"  s_add_u32 s14, s12, {FR_OFF}"); A("  s_addc_u32 s15, s13, 0"); srd(20,14,16384)
A(f"  s_mul_i32 s40, s2, {NB}")
A(f"  s_sub_u32 s41, {N}, s40"); A(f"  s_min_u32 s41, s41, {NB}")
A(f"  v_mov_b32 v2, {TS*4}"); A("  v_mul_u32_u24 v2, v2, v0"); A("  s_lshl_b32 s3, s2, 2"); A("  v_add_u32 v2, s3, v2")
A("  v_mov_b32 v10, 0"); A("  v_mov_b32 v11, 0")
A(f"  v_cmp_gt_u32 vcc, {W}, v0"); A("  s_and_saveexec_b64 s[46:47], vcc")
A("  buffer_load_dwordx2 v[10:11], v2, s[36:39], 0 offen"); A("  s_mov_b64 exec, s[46:47]")
A("  v_and_b32 v3, 15, v1"); A("  v_lshrrev_b32 v4, 4, v1"); A("  v_lshlrev_b32 v7, 4, v4")
A(f"  s_mul_i32 s45, s44, {STG}"); A(f"  s_add_u32 s45, s45, {STG_OFF}")
A("  v_mul_u32_u24 v5, 144, v3"); A("  v_add_u32 v5, v5, v7"); A("  v_add_u32 v5, s45, v5")
A("  v_lshrrev_b32 v6, 2, v3"); A("  v_lshl_add_u32 v6, v4, 2, v6"); A("  v_mul_u32_u24 v6, 144, v6")
A("  v_and_b32 v8, 3, v3"); A("  v_lshl_add_u32 v6, v8, 3, v6"); A("  v_add_u32 v6, s45, v6")
A("  v_lshlrev_b32 v8, 4, v1")
for f in range(8): A(f"  buffer_load_dwordx4 v[{64+4*f}:{67+4*f}], v8, s[20:23], 0 offen offset:{f*1024}" if f<4 else f"  buffer_load_dwordx4 v[{64+4*f}:{67+4*f}], v9, s[20:23], 0 offen offset:{(f-4)*1024}") if f!=3 else (A(f"  buffer_load_dwordx4 v[{64+4*f}:{67+4*f}], v8, s[20:23], 0 offen offset:{f*1024}"), A("  v_add_u32 v9, 4096, v8"))
A("  s_lshl_b32 s3, s44, 4"); A("  s_add_u32 s3, s3, s40")
A("  v_add_u32 v24, s3, v3"); A("  v_lshlrev_b32 v24, 7, v24"); A("  v_add_u32 v24, v24, v7")
A("  buffer_load_dwordx4 v[112:115], v24, s[16:19], 0 offen")
A("  buffer_load_dwordx4 v[116:119], v24, s[16:19], 0 offen offset:64")
A("  s_waitcnt vmcnt(0)")
for mt in range(4):
    A(f"  v_mfma_f32_16x16x32_bf16 v[{96+4*mt}:{99+4*mt}], v[{64+8*mt}:{67+8*mt}], v[112:115], 0")
    A(f"  v_mfma_f32_16x16x32_bf16 v[{96+4*mt}:{99+4*mt}], v[{68+8*mt}:{71+8*mt}], v[116:119], v[{96+4*mt}:{99+4*mt}]")
A("  s_nop 7"); A("  s_nop 7")
A("  v_mul_u32_u24 v24, 144, v3"); A("  v_lshl_add_u32 v24, v4, 3, v24"); A("  v_add_u32 v24, s45, v24")
for mt in range(4):
    A(f"  v_cvt_pk_bf16_f32 v26, v{96+4*mt}, v{97+4*mt}"); A(f"  v_cvt_pk_bf16_f32 v27, v{98+4*mt}, v{99+4*mt}")
    A(f"  ds_write_b64 v24, v[26:27] offset:{mt*32}")
A("  s_waitcnt lgkmcnt(0)")
A("  ds_read_b128 v[16:19], v5"); A("  ds_read_b128 v[20:23], v5 offset:64")
for i in range(16): A(f"  v_mov_b32 v{96+i}, 0")
def block_scan256(v, tot_s):
    A(f"  v_mov_b32 v28, v{v}")
    wave_scan(28)
    A("  v_cmp_eq_u32 vcc, 63, v1"); A("  s_and_saveexec_b64 s[46:47], vcc")
    A("  s_lshl_b32 s3, s44, 2"); A(f"  v_mov_b32 v29, {WT_OFF}"); A("  v_add_u32 v29, s3, v29")
    A("  ds_write_b32 v29, v28"); A("  s_mov_b64 exec, s[46:47]")
    A("  s_waitcnt lgkmcnt(0)"); A("  s_barrier")
    A(f"  v_mov_b32 v29, {WT_OFF}"); A("  ds_read_b128 v[30:33], v29"); A("  s_waitcnt lgkmcnt(0)")
    A("  v_readfirstlane_b32 s48, v30"); A("  v_readfirstlane_b32 s49, v31"); A("  v_readfirstlane_b32 s50, v32"); A("  v_readfirstlane_b32 s51, v33")
    A("  s_add_u32 s49, s49, s48"); A("  s_add_u32 s50, s50, s49"); A(f"  s_add_u32 s{tot_s}, s51, s50")
    A("  s_mov_b32 s3, 0"); A("  s_cmp_eq_u32 s44, 1"); A("  s_cselect_b32 s3, s48, s3")
    A("  s_cmp_eq_u32 s44, 2"); A("  s_cselect_b32 s3, s49, s3"); A("  s_cmp_eq_u32 s44, 3"); A("  s_cselect_b32 s3, s50, s3")
    A(f"  v_sub_u32 v{v}, v28, v{v}"); A(f"  v_add_u32 v{v}, s3, v{v}")
A("  v_sub_u32 v12, v11, v10")
block_scan256(12,42)
A("  v_cmp_gt_u32 vcc, 256, v0"); A("  s_and_saveexec_b64 s[46:47], vcc")
A("  v_lshlrev_b32 v14, 2, v0")
A(f"  v_mul_u32_u24 v15, {CH}, v0"); A("  v_add_u32 v15, v15, v10"); A("  v_sub_u32 v15, v15, v12")
A(f"  ds_write_b32 v14, v12 offset:{OFFS_OFF}"); A(f"  ds_write_b32 v14, v15 offset:{DELTA_OFF}")
A("  s_mov_b64 exec, s[46:47]")
A("  s_mov_b32 s43, 0")
A("K2_ROUND:")
A("  v_mov_b32 v24, -1"); A("  v_mov_b32 v25, -1"); A("  v_mov_b32 v26, -1"); A("  v_mov_b32 v27, -1")
A("  v_lshlrev_b32 v28, 4, v0"); A(f"  ds_write_b128 v28, v[24:27] offset:{LIST_OFF}")
A(f"  v_cmp_gt_u32 vcc, {LISTN//4-T2}, v0"); A("  s_and_saveexec_b64 s[46:47], vcc")
A(f"  ds_write_b128 v28, v[24:27] offset:{LIST_OFF+T2*16}"); A("  s_mov_b64 exec, s[46:47]")
A("  v_cmp_gt_u32 vcc, 16, v0"); A("  s_and_saveexec_b64 s[46:47], vcc")
A("  v_lshlrev_b32 v28, 2, v0"); A("  v_mov_b32 v24, 0"); A(f"  ds_write_b32 v28, v24 offset:{CNT_OFF}"); A("  s_mov_b64 exec, s[46:47]")
A("  s_waitcnt lgkmcnt(0)"); A("  s_barrier")
A(f"  s_add_u32 s71, s43, {CREC}"); A("  s_min_u32 s71, s71, s42")
R=RPT
for k in range(R):
    A(f"  v_add_u32 v{36+k}, s43, v0")
    if k: A(f"  v_add_u32 v{36+k}, {T2*k}, v{36+k}")
    A(f"  v_mov_b32 v{41+k}, 0")
for st in (128,64,32,16,8,4,2,1):
    for k in range(R):
        A(f"  v_add_u32 v{46+k}, {st}, v{41+k}"); A(f"  v_lshlrev_b32 v{51+k}, 2, v{46+k}")
        A(f"  ds_read_b32 v{51+k}, v{51+k} offset:{OFFS_OFF}")
    A("  s_waitcnt lgkmcnt(0)")
    for k in range(R):
        A(f"  v_cmp_le_u32 vcc, v{51+k}, v{36+k}"); A("  s_nop 1"); A(f"  v_cndmask_b32 v{41+k}, v{41+k}, v{46+k}, vcc")
for k in range(R):
    A(f"  v_lshlrev_b32 v{51+k}, 2, v{41+k}"); A(f"  ds_read_b32 v{51+k}, v{51+k} offset:{DELTA_OFF}")
A("  s_waitcnt lgkmcnt(0)")
A("  v_mov_b32 v24, 1"); A("  s_mov_b64 s[46:47], exec")
for k in range(R):
    A(f"  v_add_u32 v{51+k}, v{51+k}, v{36+k}"); A(f"  v_lshlrev_b32 v{51+k}, 2, v{51+k}")
    A(f"  v_cmp_gt_u32 s[{52+2*k}:{53+2*k}], s71, v{36+k}")
    A(f"  s_mov_b64 exec, s[{52+2*k}:{53+2*k}]")
    A(f"  buffer_load_dword v{41+k}, v{51+k}, s[32:35], 0 offen"); A("  s_mov_b64 exec, s[46:47]")
A("  s_waitcnt vmcnt(0)")
for k in range(R):
    A(f"  s_mov_b64 exec, s[{52+2*k}:{53+2*k}]")
    A(f"  v_bfe_u32 v{46+k}, v{41+k}, 4, 4"); A(f"  v_lshlrev_b32 v{46+k}, 2, v{46+k}")
    A(f"  ds_add_rtn_u32 v{51+k}, v{46+k}, v24 offset:{CNT_OFF}")
A("  s_mov_b64 exec, s[46:47]")
A("  s_waitcnt lgkmcnt(0)"); A("  s_barrier")
A("  v_mov_b32 v12, 0"); A("  v_lshlrev_b32 v28, 2, v1")
A("  v_cmp_gt_u32 vcc, 16, v1"); A("  s_and_saveexec_b64 s[46:47], vcc")
A(f"  ds_read_b32 v12, v28 offset:{CNT_OFF}"); A("  s_waitcnt lgkmcnt(0)")
A("  v_add_u32 v12, 15, v12"); A("  v_and_b32 v12, -16, v12"); A("  s_mov_b64 exec, s[46:47]")
A("  v_mov_b32 v13, v12"); wave_scan(13)
A("  v_sub_u32 v12, v13, v12")
A("  v_lshrrev_b32 v14, 4, v12"); A("  v_lshrrev_b32 v15, 4, v13"); A("  s_nop 1")
A("  v_readlane_b32 s64, v14, s44"); A("  v_readlane_b32 s65, v15, s44")
A("  s_cmp_lg_u32 s44, 0"); A("  s_cbranch_scc1 K2_NOPB")
A("  v_cmp_gt_u32 vcc, 16, v1"); A("  s_and_saveexec_b64 s[46:47], vcc")
A(f"  ds_write_b32 v28, v12 offset:{PB_OFF}"); A("  s_mov_b64 exec, s[46:47]")
A("K2_NOPB:")
A("  s_waitcnt lgkmcnt(0)"); A("  s_barrier")
for k in range(R):
    A(f"  s_mov_b64 exec, s[{52+2*k}:{53+2*k}]")
    A(f"  ds_read_b32 v{46+k}, v{46+k} offset:{PB_OFF}")
A("  s_waitcnt lgkmcnt(0)")
for k in range(R):
    A(f"  s_mov_b64 exec, s[{52+2*k}:{53+2*k}]")
    A(f"  v_add_u32 v{46+k}, v{46+k}, v{51+k}"); A(f"  v_lshlrev_b32 v{46+k}, 2, v{46+k}")
    A(f"  v_and_b32 v{41+k}, 0xffffff0f, v{41+k}")
    A(f"  ds_write_b32 v{46+k}, v{41+k} offset:{LIST_OFF}")
A("  s_mov_b64 exec, s[46:47]")
A("  s_waitcnt lgkmcnt(0)"); A("  s_barrier")
A("  s_cmp_ge_u32 s64, s65"); A("  s_cbranch_scc1 K2_P2DONE")
if VAR=='nop2': A("  s_branch K2_P2DONE")
A("  s_lshl_b32 s3, s64, 6"); A("  v_lshlrev_b32 v33, 2, v3"); A("  v_add_u32 v33, s3, v33"); A("  v_add_u32 v34, s3, v7")
for s in range(5): A(f"  ds_read_b32 v{36+s}, v33 offset:{LIST_OFF+s*64}")
A(f"  ds_read_b128 v[44:47], v34 offset:{LIST_OFF}")
A("  s_waitcnt lgkmcnt(0)")
def issue(s, ireg):
    X=64+8*s
    A(f"  v_lshrrev_b32 v35, 8, v{ireg}"); A("  v_lshl_add_u32 v35, v35, 7, v7")
    A(f"  buffer_load_dwordx4 v[{X}:{X+3}], v35, s[16:19], 0 offen")
    A(f"  buffer_load_dwordx4 v[{X+4}:{X+7}], v35, s[16:19], 0 offen offset:64")
for s in range(4): issue(s,36+s)
A("  v_mov_b32 v36, v40")
A("  s_mov_b32 s70, 0xbe38aa3b")
A("K2_LOOP:")
for s in range(4):
    X=64+8*s
    A("  s_waitcnt vmcnt(6) lgkmcnt(0)")
    A(f"  v_mfma_f32_16x16x32_bf16 v[112:115], v[{X}:{X+3}], v[16:19], 0")
    A(f"  v_mfma_f32_16x16x32_bf16 v[112:115], v[{X+4}:{X+7}], v[20:23], v[112:115]")
    A(f"  ds_write_b128 v5, v[{X}:{X+3}]"); A(f"  ds_write_b128 v5, v[{X+4}:{X+7}] offset:64")
    for i in range(4): A(f"  v_and_b32 v{48+i}, 0xff, v{44+i}")
    A("  s_waitcnt lgkmcnt(0)")
    for nt in range(4): A(f"  ds_read_b64_tr_b16 v[{116+2*nt}:{117+2*nt}], v6 offset:{nt*32}")
    for i in range(4): A(f"  v_mul_f32 v{112+i}, s70, v{112+i}")
    for i in range(4): A(f"  v_exp_f32 v{112+i}, v{112+i}")
    for i in range(4): A(f"  v_cmp_eq_u32 s[{72+2*i}:{73+2*i}], v{48+i}, v3")
    for i in range(4): A(f"  v_add_f32 v{112+i}, 1.0, v{112+i}")
    for i in range(4): A(f"  v_rcp_f32 v{112+i}, v{112+i}")
    A("  s_nop 0")
    for i in range(4): A(f"  v_cndmask_b32 v{112+i}, 0, v{112+i}, s[{72+2*i}:{73+2*i}]")
    A("  v_cvt_pk_bf16_f32 v124, v112, v113"); A("  v_cvt_pk_bf16_f32 v125, v114, v115")
    A("  s_waitcnt lgkmcnt(0)")
    issue(s,36)
    A(f"  ds_read_b32 v36, v33 offset:{LIST_OFF+(s+5)*64}")
    A(f"  ds_read_b128 v[44:47], v34 offset:{LIST_OFF+(s+1)*64}")
    for nt in range(4):
        A(f"  v_mfma_f32_16x16x16_bf16 v[{96+4*nt}:{99+4*nt}], v[{116+2*nt}:{117+2*nt}], v[124:125], v[{96+4*nt}:{99+4*nt}]")
    if s==3: A("  v_add_u32 v33, 256, v33"); A("  v_add_u32 v34, 256, v34")
    A("  s_add_u32 s64, s64, 1"); A("  s_cmp_ge_u32 s64, s65"); A("  s_cbranch_scc1 K2_LOOPEND")
A("  s_branch K2_LOOP")
A("K2_LOOPEND:")
A("K2_P2DONE:")
A("  s_waitcnt vmcnt(0) lgkmcnt(0)"); A("  s_barrier")
A(f"  s_add_u32 s43, s43, {CREC}"); A("  s_cmp_lt_u32 s43, s42"); A("  s_cbranch_scc1 K2_ROUND")
A("  v_lshlrev_b32 v8, 4, v1"); A("  v_add_u32 v8, 8192, v8"); A("  v_add_u32 v9, 4096, v8")
for p in range(8): A(f"  buffer_load_dwordx4 v[{64+4*p}:{67+4*p}], v{8 if p<4 else 9}, s[20:23], 0 offen offset:{(p%4)*1024}")
A("  s_nop 7")
for ks in range(4):
    A(f"  v_cvt_pk_bf16_f32 v{36+2*ks}, v{96+4*ks}, v{97+4*ks}"); A(f"  v_cvt_pk_bf16_f32 v{37+2*ks}, v{98+4*ks}, v{99+4*ks}")
A("  s_waitcnt vmcnt(0)")
for mt in range(4):
    for ks in range(4):
        fr=64+4*((ks//2)*4+mt)+2*(ks%2)
        c = "0" if ks==0 else f"v[{112+4*mt}:{115+4*mt}]"
        A(f"  v_mfma_f32_16x16x16_bf16 v[{112+4*mt}:{115+4*mt}], v[{fr}:{fr+1}], v[{36+2*ks}:{37+2*ks}], {c}")
A("  s_nop 7"); A("  s_nop 7")
A("  s_lshl_b32 s3, s44, 4"); A("  v_add_u32 v28, s3, v3"); A("  v_cmp_gt_u32 vcc, s41, v28"); A("  s_and_b64 exec, exec, vcc")
A("  v_add_u32 v28, s40, v28"); A("  v_lshlrev_b32 v28, 7, v28"); A("  v_lshl_add_u32 v28, v4, 3, v28")
for mt in range(4):
    A(f"  v_cvt_pk_bf16_f32 v{44+2*mt}, v{112+4*mt}, v{113+4*mt}"); A(f"  v_cvt_pk_bf16_f32 v{45+2*mt}, v{114+4*mt}, v{115+4*mt}")
    A(f"  buffer_store_dwordx2 v[{44+2*mt}:{45+2*mt}], v28, s[28:31], 0 offen offset:{mt*32}")
A("K2_END:"); A("  s_endpgm")
A('.section .rodata,"a"')
for nm,vg in (("fg_part_kernel",40),(KN,128)):
    A(".p2align 6"); A(f".amdhsa_kernel {nm}")
    A(f"  .amdhsa_next_free_vgpr {vg}"); A("  .amdhsa_next_free_sgpr 88"); A(f"  .amdhsa_accum_offset {vg}")
    A("  .amdhsa_group_segment_fixed_size 0"); A("  .amdhsa_kernarg_size 64"); A("  .amdhsa_user_sgpr_count 2")
    A("  .amdhsa_user_sgpr_kernarg_segment_ptr 1"); A("  .amdhsa_system_sgpr_workgroup_id_x 1"); A(".end_amdhsa_kernel")
open(OUTF,'w').write("\n".join(out)+"\n")
```

```python
import os
VAR=os.environ.get('VAR','')
OUTF=os.environ.get('OUTF','standalone__kernel_systems_refs_featgraph__graph.s')
N=50000; E=800000; W=250; CH=3200; NB=208; B=241; NWV=13; T2=NWV*64
TS=244; TBL_OFF=0x400000; FR_OFF=0x480000; MAGIC=80660
OFFS_OFF=0; DELTA_OFF=1088; CNT_OFF=2112; PB_OFF=2240; WT_OFF=2368; LIST_OFF=4096
LISTN=4608; STG_OFF=LIST_OFF+LISTN*4; STG=2304; LDS2=STG_OFF+NWV*STG
CREC=4096; RPT=5
out=[]
def A(s): out.append(s)
def srd(d, b, size):
    A(f"  s_mov_b32 s{d}, s{b}"); A(f"  s_mov_b32 s{d+1}, s{b+1}")
    A(f"  s_mov_b32 s{d+2}, {size}"); A(f"  s_mov_b32 s{d+3}, 0x00020000")
def wave_scan(v):
    for sh in (1,2,4,8):
        A("  s_nop 1"); A(f"  v_add_u32_dpp v{v}, v{v}, v{v} row_shr:{sh} row_mask:0xf bank_mask:0xf bound_ctrl:0")
    A("  s_nop 1"); A(f"  v_add_u32_dpp v{v}, v{v}, v{v} row_bcast:15 row_mask:0xa bank_mask:0xf")
    A("  s_nop 1"); A(f"  v_add_u32_dpp v{v}, v{v}, v{v} row_bcast:31 row_mask:0xc bank_mask:0xf")
    A("  s_nop 1")
hdr = open('standalone__kernel_systems_refs_featgraph__graph.s.ref').read().split('; Override')[0]
A(hdr.rstrip())
A(f"; @launch kernel=fg_part_kernel grid=({W+1},1,1) block=(1024,1,1) lds=1088")
A(f"; @launch kernel=standalone__kernel_systems_refs_featgraph__graph_kernel grid=({B},1,1) block=({T2},1,1) lds={LDS2}")
A('.amdgcn_target "amdgcn-amd-amdhsa--gfx950"'); A(".text")
A(".globl fg_part_kernel"); A(".p2align 8"); A(".type fg_part_kernel,@function"); A("fg_part_kernel:")
A(f"  s_cmp_gt_u32 s2, {W}"); A("  s_cbranch_scc1 K1_END")
A(f"  s_cmp_eq_u32 s2, {W}"); A("  s_cbranch_scc1 K1_FRAG")
A("  s_load_dwordx2 s[4:5], s[0:1], 8"); A("  s_load_dwordx2 s[6:7], s[0:1], 16"); A("  s_load_dwordx2 s[8:9], s[0:1], 56")
A("  v_lshlrev_b32 v1, 2, v0"); A("  v_mov_b32 v2, 0")
A("  v_cmp_gt_u32 vcc, 257, v0"); A("  s_and_saveexec_b64 s[40:41], vcc")
A("  ds_write_b32 v1, v2"); A("  s_mov_b64 exec, s[40:41]")
A("  s_waitcnt lgkmcnt(0)")
srd(12,4,E*4); srd(16,6,E*4); srd(24,8,E*4)
A(f"  s_add_u32 s10, s8, {TBL_OFF}"); A("  s_addc_u32 s11, s9, 0")
srd(28,10,W*TS*4)
A(f"  s_mul_i32 s3, s2, {CH*4}")
A("  v_lshlrev_b32 v3, 4, v0"); A("  v_add_u32 v3, s3, v3")
A(f"  v_cmp_gt_u32 vcc, {CH//4}, v0"); A("  s_and_saveexec_b64 s[40:41], vcc")
A("  buffer_load_dwordx4 v[4:7], v3, s[16:19], 0 offen")
A("  buffer_load_dwordx4 v[8:11], v3, s[12:15], 0 offen")
A("  s_mov_b64 exec, s[40:41]")
A("  s_barrier")
A("  s_waitcnt vmcnt(0)")
A(f"  s_mov_b32 s20, {MAGIC}"); A(f"  s_mov_b32 s21, {NB}"); A("  v_mov_b32 v2, 1")
A("  s_and_saveexec_b64 s[40:41], vcc")
for i in range(4):
    A(f"  v_mul_u32_u24 v{12+i}, s20, v{4+i}")
    A(f"  v_lshrrev_b32 v{12+i}, 24, v{12+i}")
    A(f"  v_mul_u32_u24 v20, s21, v{12+i}")
    A(f"  v_sub_u32 v20, v{4+i}, v20")
    A(f"  v_lshl_or_b32 v{8+i}, v{8+i}, 8, v20")
    A(f"  v_lshlrev_b32 v{12+i}, 2, v{12+i}")
    A(f"  ds_add_rtn_u32 v{16+i}, v{12+i}, v2")
A("  s_mov_b64 exec, s[40:41]")
A("  s_waitcnt lgkmcnt(0)"); A("  s_barrier")
A("  v_cmp_gt_u32 vcc, 64, v0"); A("  s_and_saveexec_b64 s[42:43], vcc"); A("  s_cbranch_execz K1_NOSCAN")
A("  v_lshlrev_b32 v21, 4, v0"); A("  ds_read_b128 v[24:27], v21"); A("  s_waitcnt lgkmcnt(0)")
A("  v_add_u32 v28, v24, v25"); A("  v_add_u32 v29, v28, v26"); A("  v_add_u32 v30, v29, v27"); A("  v_mov_b32 v31, v30")
wave_scan(31)
A("  v_sub_u32 v32, v31, v30")
A("  v_add_u32 v33, v32, v24"); A("  v_add_u32 v34, v32, v28"); A("  v_add_u32 v35, v32, v29")
A("  ds_write_b128 v21, v[32:35]")
A("  v_cmp_eq_u32 vcc, 63, v0"); A("  s_and_b64 exec, exec, vcc")
A("  v_mov_b32 v22, 1024"); A("  ds_write_b32 v22, v31")
A("K1_NOSCAN:"); A("  s_mov_b64 exec, s[42:43]")
A("  s_waitcnt lgkmcnt(0)"); A("  s_barrier")
A(f"  v_cmp_gt_u32 vcc, {CH//4}, v0"); A("  s_and_saveexec_b64 s[40:41], vcc")
for i in range(4): A(f"  ds_read_b32 v{24+i}, v{12+i}")
A("  s_waitcnt lgkmcnt(0)")
for i in range(4):
    A(f"  v_add_u32 v{24+i}, v{24+i}, v{16+i}")
    A(f"  v_lshlrev_b32 v{24+i}, 2, v{24+i}")
    A(f"  v_add_u32 v{24+i}, s3, v{24+i}")
    A(f"  buffer_store_dword v{8+i}, v{24+i}, s[24:27], 0 offen")
A("  s_mov_b64 exec, s[40:41]")
A(f"  v_cmp_gt_u32 vcc, {B+1}, v0"); A("  s_and_saveexec_b64 s[40:41], vcc")
A("  ds_read_b32 v30, v1"); A(f"  s_mul_i32 s22, s2, {TS*4}"); A("  v_add_u32 v31, s22, v1")
A("  s_waitcnt lgkmcnt(0)"); A("  buffer_store_dword v30, v31, s[28:31], 0 offen")
A("  s_mov_b64 exec, s[40:41]")
A("  s_branch K1_END")
A("K1_FRAG:")
A("  s_load_dwordx2 s[4:5], s[0:1], 24"); A("  s_load_dwordx2 s[6:7], s[0:1], 32"); A("  s_load_dwordx2 s[8:9], s[0:1], 56")
A("  v_and_b32 v1, 63, v0"); A("  v_and_b32 v3, 15, v1"); A("  v_lshrrev_b32 v4, 4, v1"); A("  v_bfe_u32 v5, v0, 6, 3")
A("  s_waitcnt lgkmcnt(0)")
srd(12,4,8192); srd(16,6,8192)
A(f"  s_add_u32 s10, s8, {FR_OFF}"); A("  s_addc_u32 s11, s9, 0"); srd(24,10,16384)
A("  v_lshlrev_b32 v30, 4, v0")
A("  v_cmp_gt_u32 vcc, 512, v0"); A("  s_and_saveexec_b64 s[40:41], vcc"); A("  s_cbranch_execz K1_FV")
A("  v_and_b32 v6, 1, v5"); A("  v_lshrrev_b32 v7, 1, v5")
A("  v_lshlrev_b32 v8, 12, v6"); A("  v_lshl_add_u32 v8, v4, 10, v8"); A("  v_lshl_add_u32 v8, v7, 5, v8"); A("  v_lshl_add_u32 v8, v3, 1, v8")
for j in range(8): A(f"  buffer_load_ushort v{10+j}, v8, s[12:15], 0 offen offset:{j*128}")
A("  s_waitcnt vmcnt(0)")
for j in range(4): A(f"  v_lshl_or_b32 v{20+j}, v{11+2*j}, 16, v{10+2*j}")
A("  buffer_store_dwordx4 v[20:23], v30, s[24:27], 0 offen")
A("K1_FV:"); A("  s_andn2_b64 exec, s[40:41], exec"); A("  s_cbranch_execz K1_END")
A("  v_lshrrev_b32 v6, 2, v5"); A("  v_and_b32 v7, 3, v5")
A("  v_lshlrev_b32 v8, 12, v6"); A("  v_lshl_add_u32 v8, v4, 9, v8"); A("  v_lshl_add_u32 v8, v7, 5, v8"); A("  v_lshl_add_u32 v8, v3, 1, v8")
for j in range(8): A(f"  buffer_load_ushort v{10+j}, v8, s[16:19], 0 offen offset:{(j//4)*2048+(j%4)*128}")
A("  s_waitcnt vmcnt(0)")
for j in range(4): A(f"  v_lshl_or_b32 v{20+j}, v{11+2*j}, 16, v{10+2*j}")
A("  buffer_store_dwordx4 v[20:23], v30, s[24:27], 0 offen")
A("K1_END:"); A("  s_endpgm")

KN="standalone__kernel_systems_refs_featgraph__graph_kernel"
A(f".globl {KN}"); A(".p2align 8"); A(f".type {KN},@function"); A(f"{KN}:")
A(f"  s_cmp_ge_u32 s2, {B}"); A("  s_cbranch_scc1 K2_END")
A("  s_load_dwordx2 s[4:5], s[0:1], 0"); A("  s_load_dwordx2 s[10:11], s[0:1], 40"); A("  s_load_dwordx2 s[12:13], s[0:1], 56")
A("  v_lshrrev_b32 v1, 6, v0"); A("  s_nop 0"); A("  v_readfirstlane_b32 s44, v1")
A("  v_and_b32 v1, 63, v0")
A("  s_waitcnt lgkmcnt(0)")
srd(16,4,N*128); srd(28,10,N*128); srd(32,12,E*4)
A(f"  s_add_u32 s14, s12, {TBL_OFF}"); A("  s_addc_u32 s15, s13, 0"); srd(36,14,W*TS*4)
A(f"  s_add_u32 s14, s12, {FR_OFF}"); A("  s_addc_u32 s15, s13, 0"); srd(20,14,16384)
A(f"  s_mul_i32 s40, s2, {NB}")
A(f"  s_sub_u32 s41, {N}, s40"); A(f"  s_min_u32 s41, s41, {NB}")
A(f"  v_mov_b32 v2, {TS*4}"); A("  v_mul_u32_u24 v2, v2, v0"); A("  s_lshl_b32 s3, s2, 2"); A("  v_add_u32 v2, s3, v2")
A("  v_mov_b32 v10, 0"); A("  v_mov_b32 v11, 0")
A(f"  v_cmp_gt_u32 vcc, {W}, v0"); A("  s_and_saveexec_b64 s[46:47], vcc")
A("  buffer_load_dwordx2 v[10:11], v2, s[36:39], 0 offen"); A("  s_mov_b64 exec, s[46:47]")
A("  v_and_b32 v3, 15, v1"); A("  v_lshrrev_b32 v4, 4, v1"); A("  v_lshlrev_b32 v7, 4, v4")
A(f"  s_mul_i32 s45, s44, {STG}"); A(f"  s_add_u32 s45, s45, {STG_OFF}")
A("  v_mul_u32_u24 v5, 144, v3"); A("  v_add_u32 v5, v5, v7"); A("  v_add_u32 v5, s45, v5")
A("  v_lshrrev_b32 v6, 2, v3"); A("  v_lshl_add_u32 v6, v4, 2, v6"); A("  v_mul_u32_u24 v6, 144, v6")
A("  v_and_b32 v8, 3, v3"); A("  v_lshl_add_u32 v6, v8, 3, v6"); A("  v_add_u32 v6, s45, v6")
A("  v_lshlrev_b32 v8, 4, v1")
for f in range(8): A(f"  buffer_load_dwordx4 v[{64+4*f}:{67+4*f}], v8, s[20:23], 0 offen offset:{f*1024}" if f<4 else f"  buffer_load_dwordx4 v[{64+4*f}:{67+4*f}], v9, s[20:23], 0 offen offset:{(f-4)*1024}") if f!=3 else (A(f"  buffer_load_dwordx4 v[{64+4*f}:{67+4*f}], v8, s[20:23], 0 offen offset:{f*1024}"), A("  v_add_u32 v9, 4096, v8"))
A("  s_lshl_b32 s3, s44, 4"); A("  s_add_u32 s3, s3, s40")
A("  v_add_u32 v24, s3, v3"); A("  v_lshlrev_b32 v24, 7, v24"); A("  v_add_u32 v24, v24, v7")
A("  buffer_load_dwordx4 v[112:115], v24, s[16:19], 0 offen")
A("  buffer_load_dwordx4 v[116:119], v24, s[16:19], 0 offen offset:64")
A("  s_waitcnt vmcnt(0)")
for mt in range(4):
    A(f"  v_mfma_f32_16x16x32_bf16 v[{96+4*mt}:{99+4*mt}], v[{64+8*mt}:{67+8*mt}], v[112:115], 0")
    A(f"  v_mfma_f32_16x16x32_bf16 v[{96+4*mt}:{99+4*mt}], v[{68+8*mt}:{71+8*mt}], v[116:119], v[{96+4*mt}:{99+4*mt}]")
A("  s_nop 7"); A("  s_nop 7")
A("  v_mul_u32_u24 v24, 144, v3"); A("  v_lshl_add_u32 v24, v4, 3, v24"); A("  v_add_u32 v24, s45, v24")
for mt in range(4):
    A(f"  v_cvt_pk_bf16_f32 v26, v{96+4*mt}, v{97+4*mt}"); A(f"  v_cvt_pk_bf16_f32 v27, v{98+4*mt}, v{99+4*mt}")
    A(f"  ds_write_b64 v24, v[26:27] offset:{mt*32}")
A("  s_waitcnt lgkmcnt(0)")
A("  ds_read_b128 v[16:19], v5"); A("  ds_read_b128 v[20:23], v5 offset:64")
for i in range(16): A(f"  v_mov_b32 v{96+i}, 0")
def block_scan256(v, tot_s):
    A(f"  v_mov_b32 v28, v{v}")
    wave_scan(28)
    A("  v_cmp_eq_u32 vcc, 63, v1"); A("  s_and_saveexec_b64 s[46:47], vcc")
    A("  s_lshl_b32 s3, s44, 2"); A(f"  v_mov_b32 v29, {WT_OFF}"); A("  v_add_u32 v29, s3, v29")
    A("  ds_write_b32 v29, v28"); A("  s_mov_b64 exec, s[46:47]")
    A("  s_waitcnt lgkmcnt(0)"); A("  s_barrier")
    A(f"  v_mov_b32 v29, {WT_OFF}"); A("  ds_read_b128 v[30:33], v29"); A("  s_waitcnt lgkmcnt(0)")
    A("  v_readfirstlane_b32 s48, v30"); A("  v_readfirstlane_b32 s49, v31"); A("  v_readfirstlane_b32 s50, v32"); A("  v_readfirstlane_b32 s51, v33")
    A("  s_add_u32 s49, s49, s48"); A("  s_add_u32 s50, s50, s49"); A(f"  s_add_u32 s{tot_s}, s51, s50")
    A("  s_mov_b32 s3, 0"); A("  s_cmp_eq_u32 s44, 1"); A("  s_cselect_b32 s3, s48, s3")
    A("  s_cmp_eq_u32 s44, 2"); A("  s_cselect_b32 s3, s49, s3"); A("  s_cmp_eq_u32 s44, 3"); A("  s_cselect_b32 s3, s50, s3")
    A(f"  v_sub_u32 v{v}, v28, v{v}"); A(f"  v_add_u32 v{v}, s3, v{v}")
A("  v_sub_u32 v12, v11, v10")
block_scan256(12,42)
A("  v_cmp_gt_u32 vcc, 256, v0"); A("  s_and_saveexec_b64 s[46:47], vcc")
A("  v_lshlrev_b32 v14, 2, v0")
A(f"  v_mul_u32_u24 v15, {CH}, v0"); A("  v_add_u32 v15, v15, v10"); A("  v_sub_u32 v15, v15, v12")
A(f"  ds_write_b32 v14, v12 offset:{OFFS_OFF}"); A(f"  ds_write_b32 v14, v15 offset:{DELTA_OFF}")
A("  s_mov_b64 exec, s[46:47]")
A("  s_mov_b32 s43, 0")
A("K2_ROUND:")
A("  v_mov_b32 v24, -1"); A("  v_mov_b32 v25, -1"); A("  v_mov_b32 v26, -1"); A("  v_mov_b32 v27, -1")
A("  v_lshlrev_b32 v28, 4, v0"); A(f"  ds_write_b128 v28, v[24:27] offset:{LIST_OFF}")
A(f"  v_cmp_gt_u32 vcc, {LISTN//4-T2}, v0"); A("  s_and_saveexec_b64 s[46:47], vcc")
A(f"  ds_write_b128 v28, v[24:27] offset:{LIST_OFF+T2*16}"); A("  s_mov_b64 exec, s[46:47]")
A("  v_cmp_gt_u32 vcc, 16, v0"); A("  s_and_saveexec_b64 s[46:47], vcc")
A("  v_lshlrev_b32 v28, 2, v0"); A("  v_mov_b32 v24, 0"); A(f"  ds_write_b32 v28, v24 offset:{CNT_OFF}"); A("  s_mov_b64 exec, s[46:47]")
A("  s_waitcnt lgkmcnt(0)"); A("  s_barrier")
A(f"  s_add_u32 s71, s43, {CREC}"); A("  s_min_u32 s71, s71, s42")
R=RPT
for k in range(R):
    A(f"  v_add_u32 v{36+k}, s43, v0")
    if k: A(f"  v_add_u32 v{36+k}, {T2*k}, v{36+k}")
    A(f"  v_mov_b32 v{41+k}, 0")
for st in (128,64,32,16,8,4,2,1):
    for k in range(R):
        A(f"  v_add_u32 v{46+k}, {st}, v{41+k}"); A(f"  v_lshlrev_b32 v{51+k}, 2, v{46+k}")
        A(f"  ds_read_b32 v{51+k}, v{51+k} offset:{OFFS_OFF}")
    A("  s_waitcnt lgkmcnt(0)")
    for k in range(R):
        A(f"  v_cmp_le_u32 vcc, v{51+k}, v{36+k}"); A("  s_nop 1"); A(f"  v_cndmask_b32 v{41+k}, v{41+k}, v{46+k}, vcc")
for k in range(R):
    A(f"  v_lshlrev_b32 v{51+k}, 2, v{41+k}"); A(f"  ds_read_b32 v{51+k}, v{51+k} offset:{DELTA_OFF}")
A("  s_waitcnt lgkmcnt(0)")
A("  v_mov_b32 v24, 1"); A("  s_mov_b64 s[46:47], exec")
for k in range(R):
    A(f"  v_add_u32 v{51+k}, v{51+k}, v{36+k}"); A(f"  v_lshlrev_b32 v{51+k}, 2, v{51+k}")
    A(f"  v_cmp_gt_u32 s[{52+2*k}:{53+2*k}], s71, v{36+k}")
    A(f"  s_mov_b64 exec, s[{52+2*k}:{53+2*k}]")
    A(f"  buffer_load_dword v{41+k}, v{51+k}, s[32:35], 0 offen"); A("  s_mov_b64 exec, s[46:47]")
A("  s_waitcnt vmcnt(0)")
for k in range(R):
    A(f"  s_mov_b64 exec, s[{52+2*k}:{53+2*k}]")
    A(f"  v_bfe_u32 v{46+k}, v{41+k}, 4, 4"); A(f"  v_lshlrev_b32 v{46+k}, 2, v{46+k}")
    A(f"  ds_add_rtn_u32 v{51+k}, v{46+k}, v24 offset:{CNT_OFF}")
A("  s_mov_b64 exec, s[46:47]")
A("  s_waitcnt lgkmcnt(0)"); A("  s_barrier")
A("  v_mov_b32 v12, 0"); A("  v_lshlrev_b32 v28, 2, v1")
A("  v_cmp_gt_u32 vcc, 16, v1"); A("  s_and_saveexec_b64 s[46:47], vcc")
A(f"  ds_read_b32 v12, v28 offset:{CNT_OFF}"); A("  s_waitcnt lgkmcnt(0)")
A("  v_add_u32 v12, 15, v12"); A("  v_and_b32 v12, -16, v12"); A("  s_mov_b64 exec, s[46:47]")
A("  v_mov_b32 v13, v12"); wave_scan(13)
A("  v_sub_u32 v12, v13, v12")
A("  v_lshrrev_b32 v14, 4, v12"); A("  v_lshrrev_b32 v15, 4, v13"); A("  s_nop 1")
A("  v_readlane_b32 s64, v14, s44"); A("  v_readlane_b32 s65, v15, s44")
A("  s_cmp_lg_u32 s44, 0"); A("  s_cbranch_scc1 K2_NOPB")
A("  v_cmp_gt_u32 vcc, 16, v1"); A("  s_and_saveexec_b64 s[46:47], vcc")
A(f"  ds_write_b32 v28, v12 offset:{PB_OFF}"); A("  s_mov_b64 exec, s[46:47]")
A("K2_NOPB:")
A("  s_waitcnt lgkmcnt(0)"); A("  s_barrier")
for k in range(R):
    A(f"  s_mov_b64 exec, s[{52+2*k}:{53+2*k}]")
    A(f"  ds_read_b32 v{46+k}, v{46+k} offset:{PB_OFF}")
A("  s_waitcnt lgkmcnt(0)")
for k in range(R):
    A(f"  s_mov_b64 exec, s[{52+2*k}:{53+2*k}]")
    A(f"  v_add_u32 v{46+k}, v{46+k}, v{51+k}"); A(f"  v_lshlrev_b32 v{46+k}, 2, v{46+k}")
    A(f"  v_and_b32 v{41+k}, 0xffffff0f, v{41+k}")
    A(f"  ds_write_b32 v{46+k}, v{41+k} offset:{LIST_OFF}")
A("  s_mov_b64 exec, s[46:47]")
A("  s_waitcnt lgkmcnt(0)"); A("  s_barrier")
A("  s_cmp_ge_u32 s64, s65"); A("  s_cbranch_scc1 K2_P2DONE")
if VAR=='nop2': A("  s_branch K2_P2DONE")
A("  s_lshl_b32 s3, s64, 6"); A("  v_lshrrev_b32 v33, 3, v1"); A("  v_mul_u32_u24 v57, 144, v33"); A("  v_lshlrev_b32 v33, 2, v33"); A("  v_add_u32 v33, s3, v33"); A("  v_add_u32 v34, s3, v7")
A("  v_and_b32 v56, 7, v1"); A("  v_lshlrev_b32 v56, 4, v56"); A("  v_add_u32 v57, v57, v56"); A("  v_add_u32 v57, s45, v57")
for s in range(5):
    A(f"  ds_read_b32 v{36+2*s}, v33 offset:{LIST_OFF+s*64}"); A(f"  ds_read_b32 v{37+2*s}, v33 offset:{LIST_OFF+s*64+32}")
A(f"  ds_read_b128 v[58:61], v34 offset:{LIST_OFF}")
A("  s_waitcnt lgkmcnt(0)")
def issue(s, ireg):
    X=64+8*s
    A(f"  v_lshrrev_b32 v35, 8, v{ireg}"); A("  v_lshl_add_u32 v35, v35, 7, v56")
    A(f"  buffer_load_dwordx4 v[{X}:{X+3}], v35, s[16:19], 0 offen")
    A(f"  v_lshrrev_b32 v35, 8, v{ireg+1}"); A("  v_lshl_add_u32 v35, v35, 7, v56")
    A(f"  buffer_load_dwordx4 v[{X+4}:{X+7}], v35, s[16:19], 0 offen")
for s in range(4): issue(s,36+2*s)
A("  v_mov_b32 v36, v44"); A("  v_mov_b32 v37, v45")
A("  s_mov_b32 s70, 0xbe38aa3b")
A("K2_LOOP:")
for s in range(4):
    X=64+8*s
    A("  s_waitcnt vmcnt(6) lgkmcnt(0)")
    A(f"  ds_write_b128 v57, v[{X}:{X+3}]"); A(f"  ds_write_b128 v57, v[{X+4}:{X+7}] offset:{8*144}")
    for i in range(4): A(f"  v_and_b32 v{48+i}, 0xff, v{58+i}")
    A("  s_waitcnt lgkmcnt(0)")
    A("  ds_read_b128 v[38:41], v5"); A("  ds_read_b128 v[42:45], v5 offset:64")
    for nt in range(4): A(f"  ds_read_b64_tr_b16 v[{116+2*nt}:{117+2*nt}], v6 offset:{nt*32}")
    issue(s,36)
    A(f"  ds_read_b32 v36, v33 offset:{LIST_OFF+(s+5)*64}"); A(f"  ds_read_b32 v37, v33 offset:{LIST_OFF+(s+5)*64+32}")
    A(f"  ds_read_b128 v[58:61], v34 offset:{LIST_OFF+(s+1)*64}")
    A("  s_waitcnt lgkmcnt(7)")
    A(f"  v_mfma_f32_16x16x32_bf16 v[112:115], v[38:41], v[16:19], 0")
    A(f"  v_mfma_f32_16x16x32_bf16 v[112:115], v[42:45], v[20:23], v[112:115]")
    for i in range(4): A(f"  v_cmp_eq_u32 s[{72+2*i}:{73+2*i}], v{48+i}, v3")
    A("  s_nop 4")
    for i in range(4): A(f"  v_mul_f32 v{112+i}, s70, v{112+i}")
    for i in range(4): A(f"  v_exp_f32 v{112+i}, v{112+i}")
    for i in range(4): A(f"  v_add_f32 v{112+i}, 1.0, v{112+i}")
    for i in range(4): A(f"  v_rcp_f32 v{112+i}, v{112+i}")
    A("  s_nop 0")
    for i in range(4): A(f"  v_cndmask_b32 v{112+i}, 0, v{112+i}, s[{72+2*i}:{73+2*i}]")
    A("  v_cvt_pk_bf16_f32 v124, v112, v113"); A("  v_cvt_pk_bf16_f32 v125, v114, v115")
    A("  s_waitcnt lgkmcnt(3)"); A("  s_nop 0")
    for nt in range(4):
        A(f"  v_mfma_f32_16x16x16_bf16 v[{96+4*nt}:{99+4*nt}], v[{116+2*nt}:{117+2*nt}], v[124:125], v[{96+4*nt}:{99+4*nt}]")
    if s==3: A("  v_add_u32 v33, 256, v33"); A("  v_add_u32 v34, 256, v34")
    A("  s_add_u32 s64, s64, 1"); A("  s_cmp_ge_u32 s64, s65"); A("  s_cbranch_scc1 K2_LOOPEND")
A("  s_branch K2_LOOP")
A("K2_LOOPEND:")
A("K2_P2DONE:")
A("  s_waitcnt vmcnt(0) lgkmcnt(0)"); A("  s_barrier")
A(f"  s_add_u32 s43, s43, {CREC}"); A("  s_cmp_lt_u32 s43, s42"); A("  s_cbranch_scc1 K2_ROUND")
A("  v_lshlrev_b32 v8, 4, v1"); A("  v_add_u32 v8, 8192, v8"); A("  v_add_u32 v9, 4096, v8")
for p in range(8): A(f"  buffer_load_dwordx4 v[{64+4*p}:{67+4*p}], v{8 if p<4 else 9}, s[20:23], 0 offen offset:{(p%4)*1024}")
A("  s_nop 7")
for ks in range(4):
    A(f"  v_cvt_pk_bf16_f32 v{36+2*ks}, v{96+4*ks}, v{97+4*ks}"); A(f"  v_cvt_pk_bf16_f32 v{37+2*ks}, v{98+4*ks}, v{99+4*ks}")
A("  s_waitcnt vmcnt(0)")
for mt in range(4):
    for ks in range(4):
        fr=64+4*((ks//2)*4+mt)+2*(ks%2)
        c = "0" if ks==0 else f"v[{112+4*mt}:{115+4*mt}]"
        A(f"  v_mfma_f32_16x16x16_bf16 v[{112+4*mt}:{115+4*mt}], v[{fr}:{fr+1}], v[{36+2*ks}:{37+2*ks}], {c}")
A("  s_nop 7"); A("  s_nop 7")
A("  s_lshl_b32 s3, s44, 4"); A("  v_add_u32 v28, s3, v3"); A("  v_cmp_gt_u32 vcc, s41, v28"); A("  s_and_b64 exec, exec, vcc")
A("  v_add_u32 v28, s40, v28"); A("  v_lshlrev_b32 v28, 7, v28"); A("  v_lshl_add_u32 v28, v4, 3, v28")
for mt in range(4):
    A(f"  v_cvt_pk_bf16_f32 v{44+2*mt}, v{112+4*mt}, v{113+4*mt}"); A(f"  v_cvt_pk_bf16_f32 v{45+2*mt}, v{114+4*mt}, v{115+4*mt}")
    A(f"  buffer_store_dwordx2 v[{44+2*mt}:{45+2*mt}], v28, s[28:31], 0 offen offset:{mt*32}")
A("K2_END:"); A("  s_endpgm")
A('.section .rodata,"a"')
for nm,vg in (("fg_part_kernel",40),(KN,128)):
    A(".p2align 6"); A(f".amdhsa_kernel {nm}")
    A(f"  .amdhsa_next_free_vgpr {vg}"); A("  .amdhsa_next_free_sgpr 88"); A(f"  .amdhsa_accum_offset {vg}")
    A("  .amdhsa_group_segment_fixed_size 0"); A("  .amdhsa_kernarg_size 64"); A("  .amdhsa_user_sgpr_count 2")
    A("  .amdhsa_user_sgpr_kernarg_segment_ptr 1"); A("  .amdhsa_system_sgpr_workgroup_id_x 1"); A(".end_amdhsa_kernel")
open(OUTF,'w').write("\n".join(out)+"\n")
```

```python
import os
VAR=os.environ.get('VAR','')
OUTF=os.environ.get('OUTF','standalone__kernel_systems_refs_featgraph__graph.s')
N=50000; E=800000; W=250; CH=3200; NB=112; B=447; NWV=7; T2=NWV*64
TS=452; TBL_OFF=0x400000; FR_OFF=0x480000; MAGIC=(2**32+111)//112
OFFS_OFF=0; DELTA_OFF=1088; CNT_OFF=2112; PB_OFF=2240; WT_OFF=2368; LIST_OFF=4096
LISTN=2560; STG_OFF=LIST_OFF+LISTN*4; STG=2304; LDS2=STG_OFF+NWV*STG
CREC=2048; RPT=5
out=[]
def A(s): out.append(s)
def srd(d, b, size):
    A(f"  s_mov_b32 s{d}, s{b}"); A(f"  s_mov_b32 s{d+1}, s{b+1}")
    A(f"  s_mov_b32 s{d+2}, {size}"); A(f"  s_mov_b32 s{d+3}, 0x00020000")
def wave_scan(v):
    for sh in (1,2,4,8):
        A("  s_nop 1"); A(f"  v_add_u32_dpp v{v}, v{v}, v{v} row_shr:{sh} row_mask:0xf bank_mask:0xf bound_ctrl:0")
    A("  s_nop 1"); A(f"  v_add_u32_dpp v{v}, v{v}, v{v} row_bcast:15 row_mask:0xa bank_mask:0xf")
    A("  s_nop 1"); A(f"  v_add_u32_dpp v{v}, v{v}, v{v} row_bcast:31 row_mask:0xc bank_mask:0xf")
    A("  s_nop 1")
hdr = open('standalone__kernel_systems_refs_featgraph__graph.s.ref').read().split('; Override')[0]
A(hdr.rstrip())
A(f"; @launch kernel=fg_part_kernel grid=({W+1},1,1) block=(1024,1,1) lds=2112")
A(f"; @launch kernel=standalone__kernel_systems_refs_featgraph__graph_kernel grid=({B},1,1) block=({T2},1,1) lds={LDS2}")
A('.amdgcn_target "amdgcn-amd-amdhsa--gfx950"'); A(".text")
A(".globl fg_part_kernel"); A(".p2align 8"); A(".type fg_part_kernel,@function"); A("fg_part_kernel:")
A(f"  s_cmp_gt_u32 s2, {W}"); A("  s_cbranch_scc1 K1_END")
A(f"  s_cmp_eq_u32 s2, {W}"); A("  s_cbranch_scc1 K1_FRAG")
A("  s_load_dwordx2 s[4:5], s[0:1], 8"); A("  s_load_dwordx2 s[6:7], s[0:1], 16"); A("  s_load_dwordx2 s[8:9], s[0:1], 56")
A("  v_lshlrev_b32 v1, 2, v0"); A("  v_mov_b32 v2, 0")
A("  v_cmp_gt_u32 vcc, 513, v0"); A("  s_and_saveexec_b64 s[40:41], vcc")
A("  ds_write_b32 v1, v2"); A("  s_mov_b64 exec, s[40:41]")
A("  s_waitcnt lgkmcnt(0)")
srd(12,4,E*4); srd(16,6,E*4); srd(24,8,E*4)
A(f"  s_add_u32 s10, s8, {TBL_OFF}"); A("  s_addc_u32 s11, s9, 0")
srd(28,10,W*TS*4)
A(f"  s_mul_i32 s3, s2, {CH*4}")
A("  v_lshlrev_b32 v3, 4, v0"); A("  v_add_u32 v3, s3, v3")
A(f"  v_cmp_gt_u32 vcc, {CH//4}, v0"); A("  s_and_saveexec_b64 s[40:41], vcc")
A("  buffer_load_dwordx4 v[4:7], v3, s[16:19], 0 offen")
A("  buffer_load_dwordx4 v[8:11], v3, s[12:15], 0 offen")
A("  s_mov_b64 exec, s[40:41]")
A("  s_barrier")
A("  s_waitcnt vmcnt(0)")
A(f"  s_mov_b32 s20, {MAGIC}"); A(f"  s_mov_b32 s21, {NB}"); A("  v_mov_b32 v2, 1")
A("  s_and_saveexec_b64 s[40:41], vcc")
for i in range(4):
    A(f"  v_mul_hi_u32 v{12+i}, s20, v{4+i}")
    A(f"  v_mul_u32_u24 v20, s21, v{12+i}")
    A(f"  v_sub_u32 v20, v{4+i}, v20")
    A(f"  v_lshl_or_b32 v{8+i}, v{8+i}, 8, v20")
    A(f"  v_lshlrev_b32 v{12+i}, 2, v{12+i}")
    A(f"  ds_add_rtn_u32 v{16+i}, v{12+i}, v2")
A("  s_mov_b64 exec, s[40:41]")
A("  s_waitcnt lgkmcnt(0)"); A("  s_barrier")
A("  v_cmp_gt_u32 vcc, 64, v0"); A("  s_and_saveexec_b64 s[42:43], vcc"); A("  s_cbranch_execz K1_NOSCAN")
A("  v_lshlrev_b32 v21, 5, v0"); A("  ds_read_b128 v[24:27], v21"); A("  ds_read_b128 v[28:31], v21 offset:16"); A("  s_waitcnt lgkmcnt(0)")
for i in range(1,8): A(f"  v_add_u32 v{24+i}, v{24+i}, v{23+i}")
A("  v_mov_b32 v32, v31")
wave_scan(32)
A("  v_sub_u32 v33, v32, v31")
for i in range(7,0,-1): A(f"  v_add_u32 v{24+i}, v33, v{23+i}")
A("  v_mov_b32 v24, v33")
A("  ds_write_b128 v21, v[24:27]"); A("  ds_write_b128 v21, v[28:31] offset:16")
A("K1_NOSCAN:"); A("  s_mov_b64 exec, s[42:43]")
A("  s_waitcnt lgkmcnt(0)"); A("  s_barrier")
A(f"  v_cmp_gt_u32 vcc, {CH//4}, v0"); A("  s_and_saveexec_b64 s[40:41], vcc")
for i in range(4): A(f"  ds_read_b32 v{24+i}, v{12+i}")
A("  s_waitcnt lgkmcnt(0)")
for i in range(4):
    A(f"  v_add_u32 v{24+i}, v{24+i}, v{16+i}")
    A(f"  v_lshlrev_b32 v{24+i}, 2, v{24+i}")
    A(f"  v_add_u32 v{24+i}, s3, v{24+i}")
    A(f"  buffer_store_dword v{8+i}, v{24+i}, s[24:27], 0 offen")
A("  s_mov_b64 exec, s[40:41]")
A(f"  v_cmp_gt_u32 vcc, {B+1}, v0"); A("  s_and_saveexec_b64 s[40:41], vcc")
A("  ds_read_b32 v30, v1"); A(f"  s_mul_i32 s22, s2, {TS*4}"); A("  v_add_u32 v31, s22, v1")
A("  s_waitcnt lgkmcnt(0)"); A("  buffer_store_dword v30, v31, s[28:31], 0 offen")
A("  s_mov_b64 exec, s[40:41]")
A("  s_branch K1_END")
A("K1_FRAG:")
A("  s_load_dwordx2 s[4:5], s[0:1], 24"); A("  s_load_dwordx2 s[6:7], s[0:1], 32"); A("  s_load_dwordx2 s[8:9], s[0:1], 56")
A("  v_and_b32 v1, 63, v0"); A("  v_and_b32 v3, 15, v1"); A("  v_lshrrev_b32 v4, 4, v1"); A("  v_bfe_u32 v5, v0, 6, 3")
A("  s_waitcnt lgkmcnt(0)")
srd(12,4,8192); srd(16,6,8192)
A(f"  s_add_u32 s10, s8, {FR_OFF}"); A("  s_addc_u32 s11, s9, 0"); srd(24,10,16384)
A("  v_lshlrev_b32 v30, 4, v0")
A("  v_cmp_gt_u32 vcc, 512, v0"); A("  s_and_saveexec_b64 s[40:41], vcc"); A("  s_cbranch_execz K1_FV")
A("  v_and_b32 v6, 1, v5"); A("  v_lshrrev_b32 v7, 1, v5")
A("  v_lshlrev_b32 v8, 12, v6"); A("  v_lshl_add_u32 v8, v4, 10, v8"); A("  v_lshl_add_u32 v8, v7, 5, v8"); A("  v_lshl_add_u32 v8, v3, 1, v8")
for j in range(8): A(f"  buffer_load_ushort v{10+j}, v8, s[12:15], 0 offen offset:{j*128}")
A("  s_waitcnt vmcnt(0)")
for j in range(4): A(f"  v_lshl_or_b32 v{20+j}, v{11+2*j}, 16, v{10+2*j}")
A("  buffer_store_dwordx4 v[20:23], v30, s[24:27], 0 offen")
A("K1_FV:"); A("  s_andn2_b64 exec, s[40:41], exec"); A("  s_cbranch_execz K1_END")
A("  v_lshrrev_b32 v6, 2, v5"); A("  v_and_b32 v7, 3, v5")
A("  v_lshlrev_b32 v8, 12, v6"); A("  v_lshl_add_u32 v8, v4, 9, v8"); A("  v_lshl_add_u32 v8, v7, 5, v8"); A("  v_lshl_add_u32 v8, v3, 1, v8")
for j in range(8): A(f"  buffer_load_ushort v{10+j}, v8, s[16:19], 0 offen offset:{(j//4)*2048+(j%4)*128}")
A("  s_waitcnt vmcnt(0)")
for j in range(4): A(f"  v_lshl_or_b32 v{20+j}, v{11+2*j}, 16, v{10+2*j}")
A("  buffer_store_dwordx4 v[20:23], v30, s[24:27], 0 offen")
A("K1_END:"); A("  s_endpgm")

KN="standalone__kernel_systems_refs_featgraph__graph_kernel"
A(f".globl {KN}"); A(".p2align 8"); A(f".type {KN},@function"); A(f"{KN}:")
A(f"  s_cmp_ge_u32 s2, {B}"); A("  s_cbranch_scc1 K2_END")
A("  s_load_dwordx2 s[4:5], s[0:1], 0"); A("  s_load_dwordx2 s[10:11], s[0:1], 40"); A("  s_load_dwordx2 s[12:13], s[0:1], 56")
A("  v_lshrrev_b32 v1, 6, v0"); A("  s_nop 0"); A("  v_readfirstlane_b32 s44, v1")
A("  v_and_b32 v1, 63, v0")
A("  s_waitcnt lgkmcnt(0)")
srd(16,4,N*128); srd(28,10,N*128); srd(32,12,E*4)
A(f"  s_add_u32 s14, s12, {TBL_OFF}"); A("  s_addc_u32 s15, s13, 0"); srd(36,14,W*TS*4)
A(f"  s_add_u32 s14, s12, {FR_OFF}"); A("  s_addc_u32 s15, s13, 0"); srd(20,14,16384)
A(f"  s_mul_i32 s40, s2, {NB}")
A(f"  s_sub_u32 s41, {N}, s40"); A(f"  s_min_u32 s41, s41, {NB}")
A(f"  v_mov_b32 v2, {TS*4}"); A("  v_mul_u32_u24 v2, v2, v0"); A("  s_lshl_b32 s3, s2, 2"); A("  v_add_u32 v2, s3, v2")
A("  v_mov_b32 v10, 0"); A("  v_mov_b32 v11, 0")
A(f"  v_cmp_gt_u32 vcc, {W}, v0"); A("  s_and_saveexec_b64 s[46:47], vcc")
A("  buffer_load_dwordx2 v[10:11], v2, s[36:39], 0 offen"); A("  s_mov_b64 exec, s[46:47]")
A("  v_and_b32 v3, 15, v1"); A("  v_lshrrev_b32 v4, 4, v1"); A("  v_lshlrev_b32 v7, 4, v4")
A(f"  s_mul_i32 s45, s44, {STG}"); A(f"  s_add_u32 s45, s45, {STG_OFF}")
A("  v_mul_u32_u24 v5, 144, v3"); A("  v_add_u32 v5, v5, v7"); A("  v_add_u32 v5, s45, v5")
A("  v_lshrrev_b32 v6, 2, v3"); A("  v_lshl_add_u32 v6, v4, 2, v6"); A("  v_mul_u32_u24 v6, 144, v6")
A("  v_and_b32 v8, 3, v3"); A("  v_lshl_add_u32 v6, v8, 3, v6"); A("  v_add_u32 v6, s45, v6")
A("  v_lshlrev_b32 v8, 4, v1")
for f in range(8): A(f"  buffer_load_dwordx4 v[{64+4*f}:{67+4*f}], v8, s[20:23], 0 offen offset:{f*1024}" if f<4 else f"  buffer_load_dwordx4 v[{64+4*f}:{67+4*f}], v9, s[20:23], 0 offen offset:{(f-4)*1024}") if f!=3 else (A(f"  buffer_load_dwordx4 v[{64+4*f}:{67+4*f}], v8, s[20:23], 0 offen offset:{f*1024}"), A("  v_add_u32 v9, 4096, v8"))
A("  s_lshl_b32 s3, s44, 4"); A("  s_add_u32 s3, s3, s40")
A("  v_add_u32 v24, s3, v3"); A("  v_lshlrev_b32 v24, 7, v24"); A("  v_add_u32 v24, v24, v7")
A("  buffer_load_dwordx4 v[112:115], v24, s[16:19], 0 offen")
A("  buffer_load_dwordx4 v[116:119], v24, s[16:19], 0 offen offset:64")
A("  s_waitcnt vmcnt(0)")
for mt in range(4):
    A(f"  v_mfma_f32_16x16x32_bf16 v[{96+4*mt}:{99+4*mt}], v[{64+8*mt}:{67+8*mt}], v[112:115], 0")
    A(f"  v_mfma_f32_16x16x32_bf16 v[{96+4*mt}:{99+4*mt}], v[{68+8*mt}:{71+8*mt}], v[116:119], v[{96+4*mt}:{99+4*mt}]")
A("  s_nop 7"); A("  s_nop 7")
A("  v_mul_u32_u24 v24, 144, v3"); A("  v_lshl_add_u32 v24, v4, 3, v24"); A("  v_add_u32 v24, s45, v24")
for mt in range(4):
    A(f"  v_cvt_pk_bf16_f32 v26, v{96+4*mt}, v{97+4*mt}"); A(f"  v_cvt_pk_bf16_f32 v27, v{98+4*mt}, v{99+4*mt}")
    A(f"  ds_write_b64 v24, v[26:27] offset:{mt*32}")
A("  s_waitcnt lgkmcnt(0)")
A("  ds_read_b128 v[16:19], v5"); A("  ds_read_b128 v[20:23], v5 offset:64")
for i in range(16): A(f"  v_mov_b32 v{96+i}, 0")
def block_scan256(v, tot_s):
    A(f"  v_mov_b32 v28, v{v}")
    wave_scan(28)
    A("  v_cmp_eq_u32 vcc, 63, v1"); A("  s_and_saveexec_b64 s[46:47], vcc")
    A("  s_lshl_b32 s3, s44, 2"); A(f"  v_mov_b32 v29, {WT_OFF}"); A("  v_add_u32 v29, s3, v29")
    A("  ds_write_b32 v29, v28"); A("  s_mov_b64 exec, s[46:47]")
    A("  s_waitcnt lgkmcnt(0)"); A("  s_barrier")
    A(f"  v_mov_b32 v29, {WT_OFF}"); A("  ds_read_b128 v[30:33], v29"); A("  s_waitcnt lgkmcnt(0)")
    A("  v_readfirstlane_b32 s48, v30"); A("  v_readfirstlane_b32 s49, v31"); A("  v_readfirstlane_b32 s50, v32"); A("  v_readfirstlane_b32 s51, v33")
    A("  s_add_u32 s49, s49, s48"); A("  s_add_u32 s50, s50, s49"); A(f"  s_add_u32 s{tot_s}, s51, s50")
    A("  s_mov_b32 s3, 0"); A("  s_cmp_eq_u32 s44, 1"); A("  s_cselect_b32 s3, s48, s3")
    A("  s_cmp_eq_u32 s44, 2"); A("  s_cselect_b32 s3, s49, s3"); A("  s_cmp_eq_u32 s44, 3"); A("  s_cselect_b32 s3, s50, s3")
    A(f"  v_sub_u32 v{v}, v28, v{v}"); A(f"  v_add_u32 v{v}, s3, v{v}")
A("  v_sub_u32 v12, v11, v10")
block_scan256(12,42)
A("  v_cmp_gt_u32 vcc, 256, v0"); A("  s_and_saveexec_b64 s[46:47], vcc")
A("  v_lshlrev_b32 v14, 2, v0")
A(f"  v_mul_u32_u24 v15, {CH}, v0"); A("  v_add_u32 v15, v15, v10"); A("  v_sub_u32 v15, v15, v12")
A(f"  ds_write_b32 v14, v12 offset:{OFFS_OFF}"); A(f"  ds_write_b32 v14, v15 offset:{DELTA_OFF}")
A("  s_mov_b64 exec, s[46:47]")
A("  s_mov_b32 s43, 0")
A("K2_ROUND:")
A("  v_mov_b32 v24, -1"); A("  v_mov_b32 v25, -1"); A("  v_mov_b32 v26, -1"); A("  v_mov_b32 v27, -1")
A("  v_lshlrev_b32 v28, 4, v0"); A(f"  ds_write_b128 v28, v[24:27] offset:{LIST_OFF}")
A(f"  v_cmp_gt_u32 vcc, {LISTN//4-T2}, v0"); A("  s_and_saveexec_b64 s[46:47], vcc")
A(f"  ds_write_b128 v28, v[24:27] offset:{LIST_OFF+T2*16}"); A("  s_mov_b64 exec, s[46:47]")
A("  v_cmp_gt_u32 vcc, 16, v0"); A("  s_and_saveexec_b64 s[46:47], vcc")
A("  v_lshlrev_b32 v28, 2, v0"); A("  v_mov_b32 v24, 0"); A(f"  ds_write_b32 v28, v24 offset:{CNT_OFF}"); A("  s_mov_b64 exec, s[46:47]")
A("  s_waitcnt lgkmcnt(0)"); A("  s_barrier")
A(f"  s_add_u32 s71, s43, {CREC}"); A("  s_min_u32 s71, s71, s42")
R=RPT
for k in range(R):
    A(f"  v_add_u32 v{36+k}, s43, v0")
    if k: A(f"  v_add_u32 v{36+k}, {T2*k}, v{36+k}")
    A(f"  v_mov_b32 v{41+k}, 0")
for st in (128,64,32,16,8,4,2,1):
    for k in range(R):
        A(f"  v_add_u32 v{46+k}, {st}, v{41+k}"); A(f"  v_lshlrev_b32 v{51+k}, 2, v{46+k}")
        A(f"  ds_read_b32 v{51+k}, v{51+k} offset:{OFFS_OFF}")
    A("  s_waitcnt lgkmcnt(0)")
    for k in range(R):
        A(f"  v_cmp_le_u32 vcc, v{51+k}, v{36+k}"); A("  s_nop 1"); A(f"  v_cndmask_b32 v{41+k}, v{41+k}, v{46+k}, vcc")
for k in range(R):
    A(f"  v_lshlrev_b32 v{51+k}, 2, v{41+k}"); A(f"  ds_read_b32 v{51+k}, v{51+k} offset:{DELTA_OFF}")
A("  s_waitcnt lgkmcnt(0)")
A("  v_mov_b32 v24, 1"); A("  s_mov_b64 s[46:47], exec")
for k in range(R):
    A(f"  v_add_u32 v{51+k}, v{51+k}, v{36+k}"); A(f"  v_lshlrev_b32 v{51+k}, 2, v{51+k}")
    A(f"  v_cmp_gt_u32 s[{52+2*k}:{53+2*k}], s71, v{36+k}")
    A(f"  s_mov_b64 exec, s[{52+2*k}:{53+2*k}]")
    A(f"  buffer_load_dword v{41+k}, v{51+k}, s[32:35], 0 offen"); A("  s_mov_b64 exec, s[46:47]")
A("  s_waitcnt vmcnt(0)")
for k in range(R):
    A(f"  s_mov_b64 exec, s[{52+2*k}:{53+2*k}]")
    A(f"  v_bfe_u32 v{46+k}, v{41+k}, 4, 4"); A(f"  v_lshlrev_b32 v{46+k}, 2, v{46+k}")
    A(f"  ds_add_rtn_u32 v{51+k}, v{46+k}, v24 offset:{CNT_OFF}")
A("  s_mov_b64 exec, s[46:47]")
A("  s_waitcnt lgkmcnt(0)"); A("  s_barrier")
A("  v_mov_b32 v12, 0"); A("  v_lshlrev_b32 v28, 2, v1")
A("  v_cmp_gt_u32 vcc, 16, v1"); A("  s_and_saveexec_b64 s[46:47], vcc")
A(f"  ds_read_b32 v12, v28 offset:{CNT_OFF}"); A("  s_waitcnt lgkmcnt(0)")
A("  v_add_u32 v12, 15, v12"); A("  v_and_b32 v12, -16, v12"); A("  s_mov_b64 exec, s[46:47]")
A("  v_mov_b32 v13, v12"); wave_scan(13)
A("  v_sub_u32 v12, v13, v12")
A("  v_lshrrev_b32 v14, 4, v12"); A("  v_lshrrev_b32 v15, 4, v13"); A("  s_nop 1")
A("  v_readlane_b32 s64, v14, s44"); A("  v_readlane_b32 s65, v15, s44")
A("  s_cmp_lg_u32 s44, 0"); A("  s_cbranch_scc1 K2_NOPB")
A("  v_cmp_gt_u32 vcc, 16, v1"); A("  s_and_saveexec_b64 s[46:47], vcc")
A(f"  ds_write_b32 v28, v12 offset:{PB_OFF}"); A("  s_mov_b64 exec, s[46:47]")
A("K2_NOPB:")
A("  s_waitcnt lgkmcnt(0)"); A("  s_barrier")
for k in range(R):
    A(f"  s_mov_b64 exec, s[{52+2*k}:{53+2*k}]")
    A(f"  ds_read_b32 v{46+k}, v{46+k} offset:{PB_OFF}")
A("  s_waitcnt lgkmcnt(0)")
for k in range(R):
    A(f"  s_mov_b64 exec, s[{52+2*k}:{53+2*k}]")
    A(f"  v_add_u32 v{46+k}, v{46+k}, v{51+k}"); A(f"  v_lshlrev_b32 v{46+k}, 2, v{46+k}")
    A(f"  v_and_b32 v{41+k}, 0xffffff0f, v{41+k}")
    A(f"  ds_write_b32 v{46+k}, v{41+k} offset:{LIST_OFF}")
A("  s_mov_b64 exec, s[46:47]")
A("  s_waitcnt lgkmcnt(0)"); A("  s_barrier")
A("  s_cmp_ge_u32 s64, s65"); A("  s_cbranch_scc1 K2_P2DONE")
if VAR=='nop2': A("  s_branch K2_P2DONE")
A("  s_lshl_b32 s3, s64, 6"); A("  v_lshrrev_b32 v33, 3, v1"); A("  v_mul_u32_u24 v57, 144, v33"); A("  v_lshlrev_b32 v33, 2, v33"); A("  v_add_u32 v33, s3, v33"); A("  v_add_u32 v34, s3, v7")
A("  v_and_b32 v56, 7, v1"); A("  v_lshlrev_b32 v56, 4, v56"); A("  v_add_u32 v57, v57, v56"); A("  v_add_u32 v57, s45, v57")
for s in range(5):
    A(f"  ds_read_b32 v{36+2*s}, v33 offset:{LIST_OFF+s*64}"); A(f"  ds_read_b32 v{37+2*s}, v33 offset:{LIST_OFF+s*64+32}")
A(f"  ds_read_b128 v[58:61], v34 offset:{LIST_OFF}")
A("  s_waitcnt lgkmcnt(0)")
def issue(s, ireg):
    X=64+8*s
    A(f"  v_lshrrev_b32 v35, 8, v{ireg}"); A("  v_lshl_add_u32 v35, v35, 7, v56")
    A(f"  buffer_load_dwordx4 v[{X}:{X+3}], v35, s[16:19], 0 offen")
    A(f"  v_lshrrev_b32 v35, 8, v{ireg+1}"); A("  v_lshl_add_u32 v35, v35, 7, v56")
    A(f"  buffer_load_dwordx4 v[{X+4}:{X+7}], v35, s[16:19], 0 offen")
for s in range(4): issue(s,36+2*s)
A("  v_mov_b32 v36, v44"); A("  v_mov_b32 v37, v45")
A("  s_mov_b32 s70, 0xbe38aa3b")
A("K2_LOOP:")
for s in range(4):
    X=64+8*s
    A("  s_waitcnt vmcnt(6) lgkmcnt(0)")
    A(f"  ds_write_b128 v57, v[{X}:{X+3}]"); A(f"  ds_write_b128 v57, v[{X+4}:{X+7}] offset:{8*144}")
    for i in range(4): A(f"  v_and_b32 v{48+i}, 0xff, v{58+i}")
    A("  s_waitcnt lgkmcnt(0)")
    A("  ds_read_b128 v[38:41], v5"); A("  ds_read_b128 v[42:45], v5 offset:64")
    for nt in range(4): A(f"  ds_read_b64_tr_b16 v[{116+2*nt}:{117+2*nt}], v6 offset:{nt*32}")
    issue(s,36)
    A(f"  ds_read_b32 v36, v33 offset:{LIST_OFF+(s+5)*64}"); A(f"  ds_read_b32 v37, v33 offset:{LIST_OFF+(s+5)*64+32}")
    A(f"  ds_read_b128 v[58:61], v34 offset:{LIST_OFF+(s+1)*64}")
    A("  s_waitcnt lgkmcnt(7)")
    A(f"  v_mfma_f32_16x16x32_bf16 v[112:115], v[38:41], v[16:19], 0")
    A(f"  v_mfma_f32_16x16x32_bf16 v[112:115], v[42:45], v[20:23], v[112:115]")
    for i in range(4): A(f"  v_cmp_eq_u32 s[{72+2*i}:{73+2*i}], v{48+i}, v3")
    A("  s_nop 4")
    for i in range(4): A(f"  v_mul_f32 v{112+i}, s70, v{112+i}")
    for i in range(4): A(f"  v_exp_f32 v{112+i}, v{112+i}")
    for i in range(4): A(f"  v_add_f32 v{112+i}, 1.0, v{112+i}")
    for i in range(4): A(f"  v_rcp_f32 v{112+i}, v{112+i}")
    A("  s_nop 0")
    for i in range(4): A(f"  v_cndmask_b32 v{112+i}, 0, v{112+i}, s[{72+2*i}:{73+2*i}]")
    A("  v_cvt_pk_bf16_f32 v124, v112, v113"); A("  v_cvt_pk_bf16_f32 v125, v114, v115")
    A("  s_waitcnt lgkmcnt(3)"); A("  s_nop 0")
    for nt in range(4):
        A(f"  v_mfma_f32_16x16x16_bf16 v[{96+4*nt}:{99+4*nt}], v[{116+2*nt}:{117+2*nt}], v[124:125], v[{96+4*nt}:{99+4*nt}]")
    if s==3: A("  v_add_u32 v33, 256, v33"); A("  v_add_u32 v34, 256, v34")
    A("  s_add_u32 s64, s64, 1"); A("  s_cmp_ge_u32 s64, s65"); A("  s_cbranch_scc1 K2_LOOPEND")
A("  s_branch K2_LOOP")
A("K2_LOOPEND:")
A("K2_P2DONE:")
A("  s_waitcnt vmcnt(0) lgkmcnt(0)"); A("  s_barrier")
A(f"  s_add_u32 s43, s43, {CREC}"); A("  s_cmp_lt_u32 s43, s42"); A("  s_cbranch_scc1 K2_ROUND")
A("  v_lshlrev_b32 v8, 4, v1"); A("  v_add_u32 v8, 8192, v8"); A("  v_add_u32 v9, 4096, v8")
for p in range(8): A(f"  buffer_load_dwordx4 v[{64+4*p}:{67+4*p}], v{8 if p<4 else 9}, s[20:23], 0 offen offset:{(p%4)*1024}")
A("  s_nop 7")
for ks in range(4):
    A(f"  v_cvt_pk_bf16_f32 v{36+2*ks}, v{96+4*ks}, v{97+4*ks}"); A(f"  v_cvt_pk_bf16_f32 v{37+2*ks}, v{98+4*ks}, v{99+4*ks}")
A("  s_waitcnt vmcnt(0)")
for mt in range(4):
    for ks in range(4):
        fr=64+4*((ks//2)*4+mt)+2*(ks%2)
        c = "0" if ks==0 else f"v[{112+4*mt}:{115+4*mt}]"
        A(f"  v_mfma_f32_16x16x16_bf16 v[{112+4*mt}:{115+4*mt}], v[{fr}:{fr+1}], v[{36+2*ks}:{37+2*ks}], {c}")
A("  s_nop 7"); A("  s_nop 7")
A("  s_lshl_b32 s3, s44, 4"); A("  v_add_u32 v28, s3, v3"); A("  v_cmp_gt_u32 vcc, s41, v28"); A("  s_and_b64 exec, exec, vcc")
A("  v_add_u32 v28, s40, v28"); A("  v_lshlrev_b32 v28, 7, v28"); A("  v_lshl_add_u32 v28, v4, 3, v28")
for mt in range(4):
    A(f"  v_cvt_pk_bf16_f32 v{44+2*mt}, v{112+4*mt}, v{113+4*mt}"); A(f"  v_cvt_pk_bf16_f32 v{45+2*mt}, v{114+4*mt}, v{115+4*mt}")
    A(f"  buffer_store_dwordx2 v[{44+2*mt}:{45+2*mt}], v28, s[28:31], 0 offen offset:{mt*32}")
A("K2_END:"); A("  s_endpgm")
A('.section .rodata,"a"')
for nm,vg in (("fg_part_kernel",40),(KN,128)):
    A(".p2align 6"); A(f".amdhsa_kernel {nm}")
    A(f"  .amdhsa_next_free_vgpr {vg}"); A("  .amdhsa_next_free_sgpr 88"); A(f"  .amdhsa_accum_offset {vg}")
    A("  .amdhsa_group_segment_fixed_size 0"); A("  .amdhsa_kernarg_size 64"); A("  .amdhsa_user_sgpr_count 2")
    A("  .amdhsa_user_sgpr_kernarg_segment_ptr 1"); A("  .amdhsa_system_sgpr_workgroup_id_x 1"); A(".end_amdhsa_kernel")
open(OUTF,'w').write("\n".join(out)+"\n")
```
